```python
import torch

def _softmax(x, axis=-1):
    return torch.softmax(x, dim=axis)
def _gelu(x):
    return torch.nn.functional.gelu(x, approximate="tanh")
def _silu(x):
    return torch.nn.functional.silu(x)
def _sigmoid(x):
    return torch.sigmoid(x)
def _layernorm(x, axis=-1, eps=1e-5):
    m = x.mean(dim=axis, keepdim=True)
    v = x.var(dim=axis, keepdim=True, unbiased=False)
    return (x - m) / torch.sqrt(v + eps)
def _scatter_add(tgt, idx, src, axis=0):
    return tgt.clone().index_add_(axis, idx, src)
def _segment_sum(src, seg, n):
    out = torch.zeros((n,) + src.shape[1:], dtype=src.dtype)
    return out.index_add_(0, seg, src)
def _pad(x, pw):
    flat = tuple(v for pair in reversed(pw) for v in pair)
    return torch.nn.functional.pad(x, flat)

kernel_name = 'interleave_layers__spectral_fnet__glu_gated_glu__prompt'

def setup_inputs():

    _w = (lambda a: (lambda t: t.to(torch.bfloat16) if t.is_floating_point() else t)(torch.as_tensor(a)))
    def _A_setup():
        B, S, D = 1, 2048, 640
        ns = torch.arange(S)[:, None] * torch.arange(S)[None, :]
        nd = torch.arange(D)[:, None] * torch.arange(D)[None, :]
        Ws_re = torch.cos(-2.0 * torch.pi * ns / S).to(float)
        Ws_im = torch.sin(-2.0 * torch.pi * ns / S).to(float)
        Wd_re = torch.cos(-2.0 * torch.pi * nd / D).to(float)
        Wd_im = torch.sin(-2.0 * torch.pi * nd / D).to(float)
        return {
            "x": _w((lambda *s: torch.randn(*s, dtype=torch.bfloat16) * 0.05)(B, S, D)),
            "dft_seq_re": _w(Ws_re),
            "dft_seq_im": _w(Ws_im),
            "dft_hid_re": _w(Wd_re),
            "dft_hid_im": _w(Wd_im),
        }
    _A_in = _A_setup()

    def _B_setup():
        B, S, D, F = 1, 2048, 640, 1728
        return {
            "x": _w((lambda *s: torch.randn(*s, dtype=torch.bfloat16) * 0.05)(B, S, D)),
            "w_gate": _w((lambda *s: torch.randn(*s, dtype=torch.bfloat16) * 1.6)(D, F)),
            "w_up": _w((lambda *s: torch.randn(*s, dtype=torch.bfloat16) * 0.8)(D, F)),
            "w_down": _w((lambda *s: torch.randn(*s, dtype=torch.bfloat16) * 0.8)(F, D)),
        }
    _B_in = _B_setup()

    return {
        "A_x": _A_in["x"],
        "A_dft_seq_re": _A_in["dft_seq_re"],
        "A_dft_seq_im": _A_in["dft_seq_im"],
        "A_dft_hid_re": _A_in["dft_hid_re"],
        "A_dft_hid_im": _A_in["dft_hid_im"],
        "B_x": _B_in["x"],
        "B_w_gate": _B_in["w_gate"],
        "B_w_up": _B_in["w_up"],
        "B_w_down": _B_in["w_down"],
    }

def reference(A_x, A_dft_seq_re, A_dft_seq_im, A_dft_hid_re, A_dft_hid_im, B_x, B_w_gate, B_w_up, B_w_down):
    def _A_ref(x, dft_seq_re, dft_seq_im, dft_hid_re, dft_hid_im):
        a = torch.einsum("bsd,ed->bse", x, dft_hid_re)
        b = torch.einsum("bsd,ed->bse", x, dft_hid_im)
        y = torch.einsum("ts,bse->bte", dft_seq_re, a) - torch.einsum("ts,bse->bte", dft_seq_im, b)
        return y

    def _B_ref(x, w_gate, w_up, w_down):
        g = torch.einsum("bsd,df->bsf", x, w_gate)
        u = torch.einsum("bsd,df->bsf", x, w_up)
        h = _sigmoid(g) * u
        return torch.einsum("bsf,fd->bsd", h, w_down)

    x = A_x
    x = x + _A_ref(_layernorm(x, axis=-1), A_dft_seq_re, A_dft_seq_im, A_dft_hid_re, A_dft_hid_im)
    x = x + _B_ref(_layernorm(x, axis=-1), B_w_gate, B_w_up, B_w_down)
    x = x + _A_ref(_layernorm(x, axis=-1), A_dft_seq_re, A_dft_seq_im, A_dft_hid_re, A_dft_hid_im)
    x = x + _B_ref(_layernorm(x, axis=-1), B_w_gate, B_w_up, B_w_down)
    return x
```

```python
import re

def expand(op):
    op = op.strip()
    neg = op.lstrip('-')
    if neg.startswith('abs(') or neg.startswith('|'):
        neg = neg.replace('abs(', '').replace(')', '').replace('|', '')
    m = re.fullmatch(r'([vas])\[(\d+):(\d+)\]', neg)
    if m:
        return [f"{m.group(1)}{i}" for i in range(int(m.group(2)), int(m.group(3)) + 1)]
    m = re.fullmatch(r'([vas])(\d+)', neg)
    if m:
        return [neg]
    if neg in ('vcc',): return ['vcc_lo', 'vcc_hi']
    if neg in ('vcc_lo', 'vcc_hi', 'm0', 'scc'): return [neg]
    if neg == 'exec': return ['exec']
    return []

TRANS = ('v_exp_f32', 'v_log_f32', 'v_rcp_f32', 'v_rsq_f32', 'v_sqrt_f32', 'v_sin_f32', 'v_cos_f32', 'v_rcp_iflag_f32')
MFMA_PASSES = {'v_mfma_f32_32x32x16_bf16': 8, 'v_mfma_f32_16x16x32_bf16': 4, 'v_mfma_f32_16x16x16_bf16': 4}

class Ins:
    __slots__ = ('text', 'op', 'reads', 'writes', 'kind', 'tag', 'passes', 'srcC', 'srcAB', 'dpp', 'storedata', 'raw', 'wide')
    def __init__(self, text):
        self.text = text; self.reads = set(); self.writes = set(); self.kind = 'other'; self.tag = None
        self.passes = 0; self.srcC = set(); self.srcAB = set(); self.dpp = False; self.storedata = set(); self.raw = False; self.wide = False
        self.op = ''

def split_ops(s):
    out = []; depth = 0; cur = ''
    for ch in s:
        if ch in '[(': depth += 1
        if ch in '])': depth -= 1
        if ch == ',' and depth == 0:
            out.append(cur.strip()); cur = ''
        else:
            cur += ch
    if cur.strip(): out.append(cur.strip())
    return out

def parse(text):
    ins = Ins(text)
    t = text.split(';')[0].strip()
    if not t or t.endswith(':') or t.startswith('.'):
        ins.kind = 'label' if t.endswith(':') else 'directive'
        return ins
    parts = t.split(None, 1)
    op = parts[0]; ins.op = op
    rest = parts[1] if len(parts) > 1 else ''
    ops = split_ops(rest)
    mods = ''
    if ops:
        last = ops[-1].split()
        ops[-1] = last[0]
        mods = ' '.join(last[1:])
    R = ins.reads; W = ins.writes
    def rd(o): R.update(expand(o))
    def wr(o): W.update(expand(o))
    base = re.sub(r'_(e32|e64|dpp|sdwa)$', '', op)
    if op.startswith('v_mfma'):
        ins.kind = 'mfma'; ins.passes = MFMA_PASSES[op]
        wr(ops[0]); rd(ops[1]); rd(ops[2]); rd(ops[3])
        ins.srcAB = set(expand(ops[1]) + expand(ops[2])); ins.srcC = set(expand(ops[3]))
    elif op.startswith('buffer_load'):
        if 'lds' in mods.split():
            ins.kind = 'dma'; rd(ops[0]); rd(ops[1]); rd(ops[2]); R.add('m0')
        else:
            ins.kind = 'vload'; wr(ops[0]); rd(ops[1]); rd(ops[2]); rd(ops[3])
    elif op.startswith('buffer_store'):
        ins.kind = 'vstore'; rd(ops[0]); rd(ops[1]); rd(ops[2]); rd(ops[3])
        ins.storedata = set(expand(ops[0])); ins.wide = op.endswith('x4') or op.endswith('x3')
    elif op.startswith('buffer_atomic'):
        ins.kind = 'vstore'; rd(ops[0]); rd(ops[1]); rd(ops[2]); rd(ops[3])
        if 'sc0' in mods.split():
            ins.kind = 'vload'; wr(ops[0])
    elif op in ('buffer_inv', 'buffer_wbl2'):
        ins.kind = 'vstore'
    elif op.startswith('global_load'):
        ins.kind = 'vload'; wr(ops[0]); rd(ops[1]); rd(ops[2])
    elif op.startswith('global_store'):
        ins.kind = 'vstore'; rd(ops[0]); rd(ops[1]); rd(ops[2]); ins.storedata = set(expand(ops[1])); ins.wide = op.endswith('x4')
    elif op.startswith('ds_read') or op.startswith('ds_bpermute') or op.startswith('ds_swizzle'):
        ins.kind = 'dsread'; wr(ops[0])
        for o in ops[1:]: rd(o)
    elif op.startswith('ds_write') or op.startswith('ds_add'):
        ins.kind = 'dswrite'
        for o in ops: rd(o)
        ins.storedata = set(expand(ops[1]))
    elif op.startswith('s_load') or op in ('s_memtime', 's_memrealtime'):
        ins.kind = 'smem'; wr(ops[0])
        if len(ops) > 1: rd(ops[1])
    elif op == 's_waitcnt': ins.kind = 'wait'
    elif op == 's_nop': ins.kind = 'nop'
    elif op == 's_barrier': ins.kind = 'barrier'
    elif op.startswith('s_cbranch') or op == 's_branch':
        ins.kind = 'branch'
        if 'scc' in op: R.add('scc')
        if 'vcc' in op: R.update(['vcc_lo', 'vcc_hi'])
        if 'exec' in op: R.add('exec')
    elif op in ('s_endpgm', 's_setprio', 's_sleep'): ins.kind = 'salu'
    elif op.startswith('s_cmp') or op.startswith('s_bitcmp'):
        ins.kind = 'salu'; W.add('scc')
        for o in ops: rd(o)
    elif op.startswith('s_'):
        ins.kind = 'salu'
        wr(ops[0])
        for o in ops[1:]: rd(o)
        if 'saveexec' in op: W.add('exec'); R.add('exec')
        if op in ('s_cselect_b32', 's_cselect_b64', 's_addc_u32', 's_subb_u32'): R.add('scc')
        if op not in ('s_mov_b32', 's_mov_b64', 's_cselect_b32', 's_cselect_b64', 's_mul_i32', 's_mul_hi_u32', 's_getreg_b32', 's_movk_i32'): W.add('scc')
        if op in ('s_addk_i32', 's_mulk_i32'): rd(ops[0])
    elif op.startswith('v_'):
        ins.kind = 'trans' if base in TRANS else 'valu'
        if 'dpp' in op or 'row_' in mods or 'quad_perm' in mods: ins.dpp = True
        if base.startswith('v_cmp'):
            wr(ops[0])
            for o in ops[1:]: rd(o)
            if base.startswith('v_cmpx'): W.add('exec')
        elif base.startswith('v_permlane') and 'swap' in base:
            wr(ops[0]); wr(ops[1]); rd(ops[0]); rd(ops[1]); ins.kind = 'permlane'
        elif base in ('v_readfirstlane_b32', 'v_readlane_b32'):
            ins.kind = 'readlane'; wr(ops[0])
            for o in ops[1:]: rd(o)
        elif base in ('v_add_co_u32', 'v_sub_co_u32', 'v_addc_co_u32'):
            wr(ops[0]); wr(ops[1])
            for o in ops[2:]: rd(o)
        else:
            wr(ops[0])
            for o in ops[1:]: rd(o)
            if base in ('v_fmac_f32', 'v_dot2c_f32_bf16', 'v_mac_f32', 'v_pk_fmac_f16'): rd(ops[0])
            if base == 'v_cndmask_b32' and len(ops) == 3: R.update(['vcc_lo', 'vcc_hi'])
            if ins.dpp: rd(ops[0])
        R.add('exec')
    else:
        raise ValueError('unknown instruction: ' + text)
    return ins

VM_KINDS = ('vload', 'vstore', 'dma')
DS_KINDS = ('dsread', 'dswrite')

class Asm:
    def __init__(self):
        self.ins = []
    def I(self, text, tag=None, raw=False):
        for line in text.split('\n'):
            line = line.strip()
            if not line: continue
            i = parse(line); i.tag = tag; i.raw = raw
            self.ins.append(i)
    __call__ = I
    def label(self, name): self.I(name + ':')
    def wait_vm(self, tags):
        i = Ins(''); i.kind = 'waitvm'; i.tag = set(tags) if not isinstance(tags, str) else {tags}; self.ins.append(i)
    def wait_ds(self, tags=None):
        i = Ins(''); i.kind = 'waitds'; i.tag = None if tags is None else (set(tags) if not isinstance(tags, str) else {tags}); self.ins.append(i)
    def drain(self, vm=True, ds=True):
        i = Ins(''); i.kind = 'drain'; i.tag = (vm, ds); self.ins.append(i)
    def comment(self, s):
        i = Ins('; ' + s); i.kind = 'directive'; self.ins.append(i)

    def _waits(self):
        out = []
        vm = []
        ds = []
        def emit_wait(nvm=None, nds=None):
            parts = []
            if nvm is not None: parts.append(f"vmcnt({min(nvm,63)})")
            if nds is not None: parts.append(f"lgkmcnt({min(nds,15)})")
            if parts:
                w = parse('s_waitcnt ' + ' '.join(parts)); out.append(w)
        def need(lst, pred):
            for idx in range(len(lst) - 1, -1, -1):
                if pred(lst[idx]): return len(lst) - 1 - idx
            return None
        for i in self.ins:
            if i.kind == 'waitvm':
                n = need(vm, lambda p: p.tag in i.tag)
                if n is not None:
                    emit_wait(nvm=n); del vm[:len(vm) - n]
                continue
            if i.kind == 'waitds':
                n = need(ds, (lambda p: True) if i.tag is None else (lambda p: p.tag in i.tag))
                if n is not None:
                    emit_wait(nds=n); del ds[:len(ds) - n]
                continue
            if i.kind == 'drain':
                a = 0 if (i.tag[0] and vm) else None
                b = 0 if (i.tag[1] and ds) else None
                emit_wait(a, b)
                if i.tag[0]: vm.clear()
                if i.tag[1]: ds.clear()
                continue
            if i.kind in ('label', 'branch') and not i.raw:
                if any(p.writes for p in vm) or any(p.writes for p in ds):
                    pass
            if i.kind == 'wait' and i.raw:
                out.append(i); continue
            if i.kind == 'wait':
                m = re.search(r'vmcnt\((\d+)\)', i.text)
                if m:
                    n = int(m.group(1))
                    if len(vm) > n: del vm[:len(vm) - n]
                m = re.search(r'lgkmcnt\((\d+)\)', i.text)
                if m:
                    n = int(m.group(1))
                    if len(ds) > n: del ds[:len(ds) - n]
                out.append(i); continue
            if not i.raw:
                touch = i.reads | i.writes
                nvm = need(vm, lambda p: bool(p.writes & touch))
                nds = need(ds, lambda p: bool(p.writes & touch))
                if nvm is not None or nds is not None:
                    emit_wait(nvm, nds)
                    if nvm is not None: del vm[:len(vm) - nvm]
                    if nds is not None: del ds[:len(ds) - nds]
            out.append(i)
            if i.kind in VM_KINDS and not i.raw:
                vm.append(i)
                if len(vm) > 63: del vm[:len(vm) - 63]
            if i.kind in DS_KINDS and not i.raw:
                ds.append(i)
                if len(ds) > 15: del ds[:len(ds) - 15]
            if i.kind == 'smem' and not i.raw:
                pass
        return out

    @staticmethod
    def _need_states(p, c):
        n = 0
        valu_like = ('valu', 'trans', 'permlane', 'readlane')
        pv = p.kind in valu_like
        vregs = lambda s: {r for r in s if r[0] in 'va' and r[1:].isdigit()}
        sregs = lambda s: {r for r in s if (r[0] == 's' and r[1:].isdigit()) or r.startswith('vcc')}
        if p.kind == 'mfma':
            D = p.writes
            if c.kind == 'mfma':
                if D & c.srcAB: n = max(n, {4: 8, 8: 12}[p.passes])
                if D & c.srcC:
                    if not (c.srcC == D and c.passes == p.passes): n = max(n, {4: 6, 8: 10}[p.passes])
                if (D & c.writes) and not (c.writes == D and c.srcC == D and c.passes == p.passes):
                    n = max(n, {4: 6, 8: 10}[p.passes])
            elif c.kind in valu_like or c.kind in VM_KINDS or c.kind in DS_KINDS:
                if D & (c.reads | c.writes): n = max(n, {4: 8, 8: 12}[p.passes])
            if c.kind in valu_like and (p.srcC & c.writes): n = max(n, {4: 3, 8: 7}[p.passes])
        if pv:
            wv = vregs(p.writes); ws = sregs(p.writes)
            if c.kind == 'mfma' and (wv & c.reads): n = max(n, 2)
            if c.kind in VM_KINDS and (ws & c.reads): n = max(n, 5)
            if c.kind in valu_like and (ws & c.reads): n = max(n, 2)
            if c.kind == 'readlane' and (wv & c.reads): n = max(n, 1)
            if c.kind == 'readlane' and (ws & c.reads): n = max(n, 4)
            if p.kind == 'trans' and c.kind in valu_like + ('mfma',) and c.kind != 'trans' and (wv & c.reads): n = max(n, 1)
            if p.kind == 'trans' and c.kind == 'trans' and (wv & c.reads): n = max(n, 1)
            if c.dpp and (wv & c.reads): n = max(n, 2)
            if c.kind == 'permlane' and (wv & c.reads): n = max(n, 2)
            if 'exec' in p.writes and c.dpp: n = max(n, 5)
            if 'exec' in p.writes and c.kind == 'mfma': n = max(n, 4)
        if p.op.startswith('v_dot2') and (p.writes & (c.reads | c.writes)):
            if not (c.op == p.op and not (p.writes & (c.reads - c.writes)) ):
                n = max(n, 3)
        if p.kind in ('vstore',) and p.wide and (p.storedata & c.writes):
            n = max(n, 2 if c.kind in valu_like else 1)
        if p.kind == 'dswrite' and len(p.storedata) >= 3 and (p.storedata & c.writes):
            n = max(n, 2 if c.kind in valu_like else 1)
        if p.kind == 'salu' and 'm0' in p.writes and c.kind == 'dma': n = max(n, 1)
        return n

    def _hazards(self, ins):
        out = []
        hist = []
        WINDOW = 14
        nnop = 0
        for c in ins:
            if c.kind in ('directive',):
                out.append(c); continue
            if c.kind == 'label':
                out.append(c); continue
            need = 0
            dist = 0
            for p in reversed(hist):
                r = self._need_states(p, c)
                if r > dist: need = max(need, r - dist)
                dist += (int(p.text.split()[1], 0) + 1) if p.kind == 'nop' else 1
                if dist >= WINDOW: break
            while need > 0:
                k = min(need, 16)
                nop = parse(f's_nop {k-1}'); out.append(nop); hist.append(nop); need -= k; nnop += 1
            out.append(c); hist.append(c)
            if len(hist) > 2 * WINDOW: del hist[:WINDOW]
        self.nnop = nnop
        return out

    def text(self):
        ins = self._hazards(self._waits())
        lines = []
        for i in ins:
            if i.kind == 'label': lines.append(i.text)
            else: lines.append('    ' + i.text)
        return '\n'.join(lines) + '\n'

def kernel_block(name, body, vgpr, sgpr=100, accum=None):
    if accum is None: accum = min(256, (vgpr + 3) // 4 * 4)
    return f""".text
.globl {name}
.p2align 8
.type {name},@function
{name}:
{body}    s_endpgm
.section .rodata,"a"
.p2align 6
.amdhsa_kernel {name}
  .amdhsa_next_free_vgpr {vgpr}
  .amdhsa_next_free_sgpr {sgpr}
  .amdhsa_accum_offset {accum}
  .amdhsa_group_segment_fixed_size 0
  .amdhsa_kernarg_size 96
  .amdhsa_user_sgpr_count 2
  .amdhsa_user_sgpr_kernarg_segment_ptr 1
  .amdhsa_system_sgpr_workgroup_id_x 1
.end_amdhsa_kernel
"""
```

```python
from asmlib import *
from layout import *

SRD_WS = 's[4:7]'
def load_srd(A, sbase, ka_off, size):
    A(f"s_load_dwordx2 s[{sbase}:{sbase+1}], s[0:1], {ka_off}")
    A(f"s_mov_b32 s{sbase+2}, {size}")
    A(f"s_mov_b32 s{sbase+3}, 0x20000")

def prologue(A, nwg, exit_label, srds):
    A(f"s_cmp_ge_u32 s2, {nwg}")
    A(f"s_cbranch_scc1 {exit_label}")
    load_srd(A, 4, KA['ws'], WS_USED)
    for (sb, key, size) in srds:
        load_srd(A, sb, KA[key], size)
    A("v_lshrrev_b32 v1, 6, v0")
    A("v_and_b32 v0, 63, v0")
    A("v_readfirstlane_b32 s20, v1")
    A("s_mov_b32 s21, s2")
    A("s_waitcnt lgkmcnt(0)")

def udiv_magic(d, maxn):
    for sh in range(0, 32):
        m = -(-(1 << sh) // d)
        if m * maxn >= (1 << 32): continue
        if all((n * m) >> sh == n // d for n in range(maxn)): return m, sh
    raise ValueError

def v_udiv(A, dst, src, d, maxn):
    m, sh = udiv_magic(d, maxn)
    assert m < (1 << 24)
    A(f"v_mul_u32_u24 {dst}, {m}, {src}")
    A(f"v_lshrrev_b32 {dst}, {sh}, {dst}")

def s_udiv(A, dst, src, d, maxn):
    m, sh = udiv_magic(d, maxn)
    A(f"s_mul_i32 {dst}, {src}, {m}")
    A(f"s_lshr_b32 {dst}, {dst}, {sh}")

STAMP = 60 << 20
def stamp_begin(A):
    A("s_memtime s[50:51]"); A("s_memrealtime s[52:53]"); A("s_waitcnt lgkmcnt(0)")
def stamp_mid(A, k):
    A.drain(vm=False, ds=True)
    A(f"s_memtime s[58:59]"); A("s_waitcnt lgkmcnt(0)"); A(f"s_mov_b32 s{60+k}, s58")
def stamp_end(A, nmid=0):
    A.drain()
    A("s_waitcnt vmcnt(0)")
    A("s_memtime s[54:55]"); A("s_memrealtime s[56:57]"); A("s_waitcnt lgkmcnt(0)")
    A("s_lshl_b32 s58, s21, 2"); A("s_add_u32 s58, s58, s20"); A("s_lshl_b32 s58, s58, 6"); A(f"s_add_u32 s58, s58, {STAMP}")
    A("s_mov_b32 s46, 0x4000000")
    A("s_mov_b32 s44, s4"); A("s_mov_b32 s45, s5"); A("s_mov_b32 s47, 0x20000")
    vals = ['s50', 's54', 's52', 's56'] + [f's{60+k}' for k in range(nmid)]
    A("v_mov_b32 v2, 0")
    for i, s in enumerate(vals):
        A(f"v_mov_b32 v3, {s}")
        A(f"buffer_store_dword v3, v2, s[44:47], s58 offen offset:{4*i}")
    A("s_waitcnt vmcnt(0)")
```

```python
S, D, F = 2048, 640, 1728
NT1 = 108
W1F = 0;                     W1F_SZ = NT1*40*1024
WDF = W1F + W1F_SZ;          WDF_SZ = 8*54*5*1024
CSP = WDF + WDF_SZ;          CSP_SZ = 5*NT1*128
CS  = CSP + CSP_SZ;          CS_SZ = NT1*128
def al(x): return (x + 4095)//4096*4096
Z1  = al(CS + CS_SZ);        Z_SZ = 16*32*320*16
Z2  = Z1 + Z_SZ
X1F = Z2 + Z_SZ;             XF_SZ = S*D*2
X3F = X1F + XF_SZ
ST1 = X3F + XF_SZ;           ST_SZ = 16*128*8*8
ST3 = ST1 + ST_SZ
HH1 = ST3 + ST_SZ;           HH_SZ = 16*2*54*4*1024
HH2 = HH1 + HH_SZ
X2  = HH2 + HH_SZ;           X_SZ = S*D*2
ST2 = X2 + X_SZ
SYNC = al(ST2 + ST_SZ);        SYNC_SZ = 65536
WS_USED = SYNC + SYNC_SZ
KA = dict(x=0, sre=8, sim=16, hre=24, him=32, bx=40, wg=48, wu=56, wd=64, out=72, dbg=80, ws=88)
if __name__ == '__main__':
    for k,v in list(globals().items()):
        if isinstance(v,int): print(k, v, hex(v))
```

```python
from common import *
from phase_b2 import tile_roles
import struct
def f2u(x): return struct.unpack('<I', struct.pack('<f', x))[0]

class A1Cfg:
    R = 4

STG = 36864

def dft16_consts(A, vC, vS, tmp):
    t = tmp
    A(f"v_and_b32 v{t}, 15, v0"); A(f"v_lshrrev_b32 v{t+1}, 4, v0"); A(f"v_lshlrev_b32 v{t+1}, 2, v{t+1}")
    for j in range(4):
        A(f"v_add_u32 v{t+2}, {j}, v{t+1}"); A(f"v_mul_u32_u24 v{t+2}, v{t}, v{t+2}"); A(f"v_and_b32 v{t+2}, 15, v{t+2}")
        A(f"v_cvt_f32_u32 v{t+2}, v{t+2}"); A(f"v_mul_f32 v{t+2}, {f2u(1/16):#x}, v{t+2}")
        A(f"v_cos_f32 v{t+3+j}, v{t+2}"); A(f"v_sin_f32 v{t+7+j}, v{t+2}")
    for p in range(2):
        A(f"v_cvt_pk_bf16_f32 v{vC+p}, v{t+3+2*p}, v{t+4+2*p}"); A(f"v_cvt_pk_bf16_f32 v{vS+p}, v{t+7+2*p}, v{t+8+2*p}")

def phase_A1(A, x_srd, x_off, Z, re_srd, im_srd, cfg=A1Cfg, wave='s20', ld_aux='', st_aux='', roles=True, diag=False):
    ws = SRD_WS
    if roles: tile_roles(A)
    vC, vS = 40, 42
    ACC = 64
    FA = 96; FB = 112
    vXo = 16
    vWo, vWo0 = 20, 21
    vRA = 24; vRB = 32
    vSum, vSq = 44, 45
    rb = int(re_srd[2:].split(':')[0]); ib = int(im_srd[2:].split(':')[0])
    A(f"s_cmp_lt_u32 {wave}, 2")
    A(f"s_cselect_b32 s40, s{rb}, s{ib}"); A(f"s_cselect_b32 s41, s{rb+1}, s{ib+1}")
    A(f"s_mov_b32 s42, {D*D*2}"); A("s_mov_b32 s43, 0x20000")
    A("v_lshrrev_b32 v1, 4, v0"); A("v_and_b32 v2, 15, v0")
    for i in range(4):
        A(f"v_add_u32 v3, {4*i}, v1"); A("v_xor_b32 v3, v2, v3")
        A(f"v_mul_u32_u24 v4, 163840, v1"); A(f"v_lshl_add_u32 v{vXo+i}, v3, 4, v4")
    A(f"s_lshl_b32 s28, {wave}, 2"); A("v_add_u32 v3, s28, v1"); A("v_xor_b32 v3, v2, v3")
    A("v_mul_u32_u24 v4, 1280, v1"); A(f"v_lshl_add_u32 v{vWo}, v3, 4, v4")
    A(f"s_or_b32 s29, s24, {wave}"); A("s_cmp_eq_u32 s29, 0"); A(f"s_cselect_b32 s29, {320*1280}, 0")
    A("v_cmp_eq_u32 vcc, 0, v1"); A(f"v_mov_b32 v5, s29"); A(f"v_cndmask_b32 v5, 0, v5, vcc"); A(f"v_add_u32 v{vWo0}, v{vWo}, v5")
    A(f"s_lshl_b32 s29, s23, 2"); A(f"s_add_u32 s29, s29, {wave}"); A("s_lshl_b32 s29, s29, 4"); A("s_add_u32 s29, s29, s22"); A("s_mul_i32 s29, s29, 1280")
    if x_off: A(f"s_add_u32 s29, s29, {x_off}")
    A(f"s_mul_i32 s30, s24, 40"); A(f"s_and_b32 s31, {wave}, 1"); A("s_lshl_b32 s31, s31, 2"); A("s_add_u32 s30, s30, s31"); A("s_mul_i32 s30, s30, 1280")
    A(f"s_lshl_b32 s31, {wave}, 12")
    A(f"s_lshl_b32 s32, {wave}, 10"); A("s_add_u32 s32, s32, 16384")
    def dma_stage(s):
        L = []; slot = (s % cfg.R) * STG
        for i in range(4):
            L.append([f"s_add_u32 m0, s31, {slot + i*1024}", f"s_add_u32 s33, s29, {i*4*163840 + s*256}",
                      (f"buffer_load_dwordx4 v{vXo+i}, {x_srd}, s33 offen lds{ld_aux}", f"s{s}")])
        for ct in range(5):
            L.append([f"s_add_u32 m0, s32, {slot + ct*4096}", f"s_add_u32 s33, s30, {ct*8*1280 + s*256}",
                      (f"buffer_load_dwordx4 v{vWo0 if ct == 0 else vWo}, s[40:43], s33 offen lds", f"s{s}")])
        return L
    def emit(x):
        if isinstance(x, tuple): A(x[0], tag=x[1])
        else: A(x)
    NS = 5
    for s in range(min(cfg.R - 1, NS)):
        for d in dma_stage(s):
            for x in d: emit(x)
    for qq in range(4):
        A(f"v_add_u32 v3, {4*qq}, v1"); A("v_xor_b32 v3, v2, v3"); A("v_lshlrev_b32 v3, 4, v3"); A("v_lshl_add_u32 v3, v2, 8, v3")
        A(f"v_add_u32 v{vRA+qq}, s31, v3"); A(f"v_add_u32 v{vRA+4+qq}, {2*STG}, v{vRA+qq}")
        A(f"v_add_u32 v{vRB+qq}, 16384, v3"); A(f"v_add_u32 v{vRB+4+qq}, {2*STG}, v{vRB+qq}")
    dft16_consts(A, vC, vS, 48)
    A(f"v_mov_b32 v{vSum}, 0"); A(f"v_mov_b32 v{vSq}, 0"); A("s_mov_b32 s34, 0x3f803f80")
    def reads(k):
        s, qq = divmod(k, 4); slot = s % cfg.R; hi = 4 if slot >= 2 else 0; off = (slot % 2) * STG
        fa = FA + 4 * (k % 2); fb = FB + 20 * (k % 2)
        L = [f"ds_read_b128 v[{fa}:{fa+3}], v{vRA+hi+qq} offset:{off}"]
        for ct in range(5): L.append(f"ds_read_b128 v[{fb+4*ct}:{fb+4*ct+3}], v{vRB+hi+qq} offset:{off+ct*4096}")
        return L
    dq = []
    def enter(s):
        A.wait_vm(f"s{s}"); A("s_barrier")
        if diag and s == 0: stamp_mid(A, 0)
        nx = s + cfg.R - 1
        if nx < NS: dq.extend(dma_stage(nx))
    enter(0)
    for x in reads(0): A(x)
    for k in range(20):
        nk = k + 1
        if nk < 20:
            if nk % 4 == 0:
                A.wait_ds()
                enter(nk // 4)
            rl = reads(nk)
        else: rl = []
        fa = FA + 4 * (k % 2); fb = FB + 20 * (k % 2)
        for ct in range(5):
            a = ACC + 4 * ct; c = "0" if k == 0 else f"v[{a}:{a+3}]"
            A(f"v_mfma_f32_16x16x32_bf16 v[{a}:{a+3}], v[{fa}:{fa+3}], v[{fb+4*ct}:{fb+4*ct+3}], {c}")
            if rl: A(rl.pop(0))
            if ct < 4:
                A(f"v_dot2c_f32_bf16 v{vSq}, v{fa+ct}, v{fa+ct}"); A(f"v_dot2c_f32_bf16 v{vSum}, s34, v{fa+ct}")
            if dq:
                for x in dq.pop(0): emit(x)
        while rl: A(rl.pop(0))
    while dq:
        for x in dq.pop(0): emit(x)
    if diag: stamp_mid(A, 1)
    for v in (vSum, vSq):
        A(f"v_mov_b32 v3, v{v}"); A(f"v_permlane16_swap_b32 v{v}, v3"); A(f"v_add_f32 v{v}, v{v}, v3")
        A(f"v_mov_b32 v3, v{v}"); A(f"v_permlane32_swap_b32 v{v}, v3"); A(f"v_add_f32 v{v}, v{v}, v3")
    A(f"v_mul_f32 v{vSum}, {f2u(1/640):#x}, v{vSum}"); A(f"v_mul_f32 v{vSq}, {f2u(1/640):#x}, v{vSq}")
    A(f"v_fma_f32 v{vSq}, -v{vSum}, v{vSum}, v{vSq}"); A(f"v_add_f32 v{vSq}, {f2u(1e-5):#x}, v{vSq}")
    A(f"v_rsq_f32 v{vSq}, v{vSq}")
    A("v_lshlrev_b32 v3, 4, v1")
    for r in range(4):
        A(f"v_add_u32 v4, {4*r}, v3"); A(f"ds_bpermute_b32 v{48+r}, v4, v{vSq}")
    PB = 152; PP = 160; PQ = 180; ZV = 200
    for ct in range(5):
        a = ACC + 4 * ct
        for r in range(4): A(f"v_mul_f32 v{a+r}, v{a+r}, v{48+r}")
    for ct in range(5):
        a = ACC + 4 * ct; b = FB + 2 * ct
        A(f"v_cvt_pk_bf16_f32 v{b}, v{a}, v{a+1}"); A(f"v_cvt_pk_bf16_f32 v{b+1}, v{a+2}, v{a+3}")
    for ct in range(5):
        b = FB + 2 * ct
        A(f"v_mfma_f32_16x16x16_bf16 v[{PP+4*ct}:{PP+4*ct+3}], v[{vC}:{vC+1}], v[{b}:{b+1}], 0")
        A(f"v_mfma_f32_16x16x16_bf16 v[{PQ+4*ct}:{PQ+4*ct+3}], v[{vS}:{vS+1}], v[{b}:{b+1}], 0")
    A("v_mov_b32 v5, 1.0"); A("v_mov_b32 v6, -1.0"); A("v_cmp_gt_u32 vcc, 8, v2"); A("v_cndmask_b32 v5, v6, v5, vcc")
    for ct in range(5):
        for r in range(4):
            A(f"v_fmac_f32_dpp v{PP+4*ct+r}, v{PQ+4*ct+r}, v5 row_ror:8 row_mask:0xf bank_mask:0xf")
    A("s_barrier")
    A("v_and_b32 v3, 7, v2"); A("v_lshrrev_b32 v4, 3, v2")
    A("v_lshlrev_b32 v3, 4, v3"); A("v_lshl_add_u32 v3, v4, 3, v3")
    A("v_mul_u32_u24 v4, 2560, v1"); A("v_add_u32 v3, v3, v4")
    A(f"s_lshl_b32 s33, {wave}, 1"); A("v_add_u32 v3, s33, v3")
    for ct in range(5):
        for p in range(2):
            z = ZV + 2 * ct + p
            A(f"v_cvt_pk_bf16_f32 v{z}, v{PP+4*ct+2*p}, v{PP+4*ct+2*p+1}")
            A(f"ds_write_b16 v3, v{z} offset:{(2*p)*640 + ct*128}")
            A(f"ds_write_b16_d16_hi v3, v{z} offset:{(2*p+1)*640 + ct*128}")
    A.drain(vm=False); A("s_barrier")
    A(f"s_lshl_b32 s33, {wave}, 6"); A("v_add_u32 v7, s33, v0")
    A("s_lshl_b32 s33, s22, 1"); A("s_add_u32 s33, s33, s23"); A("s_mul_i32 s33, s33, 320"); A("s_mul_i32 s35, s24, 40"); A("s_add_u32 s33, s33, s35")
    A("s_lshl_b32 s33, s33, 4"); A(f"s_add_u32 s33, s33, {Z}")
    for u in range(3):
        A(f"v_add_u32 v8, {256*u}, v7")
        v_udiv(A, 'v9', 'v8', 40, 768)
        A("v_mul_u32_u24 v10, 40, v9"); A("v_sub_u32 v10, v8, v10")
        A(f"v_mul_u32_u24 v9, {32*5120}, v9"); A(f"v_lshl_add_u32 v{12+u}, v10, 4, v9")
        A("v_lshlrev_b32 v8, 4, v8")
        A(f"ds_read_b128 v[{ZV+12+4*u}:{ZV+15+4*u}], v8")
    for u in range(3):
        if u == 2:
            A("v_cmp_gt_u32 vcc, 128, v7"); A("s_and_saveexec_b64 s[36:37], vcc")
            A(f"s_cbranch_execz A1SKIP")
        A(f"buffer_store_dwordx4 v[{ZV+12+4*u}:{ZV+15+4*u}], v{12+u}, {ws}, s33 offen{st_aux}", tag='z')
        if u == 2:
            A.label("A1SKIP"); A("s_mov_b64 exec, s[36:37]")

def kernel_A1(name, from_x2, Z, cfg=A1Cfg, diag=False):
    A = Asm()
    srds = [(12, 'hre', D*D*2), (16, 'him', D*D*2)]
    if not from_x2: srds.append((8, 'x', S*D*2))
    prologue(A, 256, f"{name}_exit", srds)
    if diag: stamp_begin(A)
    phase_A1(A, SRD_WS if from_x2 else 's[8:11]', X2 if from_x2 else 0, Z, 's[12:15]', 's[16:19]', cfg, diag=diag)
    if diag: stamp_end(A, 2)
    A.label(f"{name}_exit")
    return kernel_block(name, A.text().replace('A1SKIP', name + '_skip'), vgpr=256, sgpr=80)
```

```python
from common import *
from phase_b2 import tile_roles
import struct
def f2u(x): return struct.unpack('<I', struct.pack('<f', x))[0]

def a2_consts(A, vB, wave='s20', tmp=48):
    t = tmp
    A(f"v_and_b32 v{t}, 15, v0"); A(f"v_lshrrev_b32 v{t+1}, 4, v0")
    A(f"s_lshl_b32 s28, s23, 2"); A(f"s_add_u32 s28, s28, {wave}"); A("s_lshl_b32 s28, s28, 4"); A("s_add_u32 s28, s28, s22")
    A(f"v_lshl_add_u32 v{t}, v{t}, 7, s28")
    A(f"v_lshrrev_b32 v{t+2}, 1, v{t+1}"); A(f"v_and_b32 v{t+1}, 1, v{t+1}"); A(f"v_lshl_add_u32 v{t+1}, v{t+1}, 6, v{t+2}")
    A(f"v_mul_u32_u24 v{t+1}, v{t}, v{t+1}")
    A(f"s_cmp_lt_u32 s24, 4"); A(f"s_mov_b32 s29, {f2u(1/2048):#x}"); A(f"s_cselect_b32 s29, s29, {f2u(-1/2048):#x}")
    for q in range(8):
        for i in range(4):
            k = 2 * q + 16 * i
            A(f"v_mad_u32_u24 v{t+2+i}, v{t}, {k}, v{t+1}" if k <= 64 else f"v_mul_u32_u24 v{t+2+i}, {k}, v{t}")
            if k > 64: A(f"v_add_u32 v{t+2+i}, v{t+2+i}, v{t+1}")
            A(f"v_and_b32 v{t+2+i}, 0x7ff, v{t+2+i}")
            A(f"v_cvt_f32_u32 v{t+2+i}, v{t+2+i}")
            A(f"v_mul_f32 v{t+2+i}, s29, v{t+2+i}")
        for i in range(4): A(f"v_cos_f32 v{t+6+i}, v{t+2+i}")
        for i in range(4): A(f"v_sin_f32 v{t+2+i}, v{t+2+i}")
        b = vB + 4 * q
        A(f"v_cvt_pk_bf16_f32 v{b}, v{t+6}, v{t+7}"); A(f"v_cvt_pk_bf16_f32 v{b+1}, v{t+8}, v{t+9}")
        A(f"v_cvt_pk_bf16_f32 v{b+2}, v{t+2}, v{t+3}"); A(f"v_cvt_pk_bf16_f32 v{b+3}, v{t+4}, v{t+5}")

def phase_A2(A, Z, x_srd, x_off, XF, ST, do_cs=False, wave='s20', ld_aux='', st_aux='', roles=True, diag=False, pfx='a2'):
    ws = SRD_WS
    if roles: tile_roles(A)
    vB = 96
    ACC = 64; FA = 128
    RES = 176
    vZ, vZ0, vL = 10, 11, 12
    A("v_and_b32 v1, 15, v0"); A("v_lshrrev_b32 v2, 4, v0")
    A(f"v_lshlrev_b32 v{vL}, 4, v0")
    A("s_cmp_lt_u32 s24, 4")
    A("s_sub_u32 s28, 16, s22"); A("s_and_b32 s28, s28, 15")
    A("s_cmp_lt_u32 s24, 4"); A("s_cselect_b32 s28, s22, s28")
    A("s_mul_i32 s29, s24, 80"); A("s_sub_u32 s30, 640, s29"); A("s_cmp_lt_u32 s24, 4"); A("s_cselect_b32 s29, s29, s30")
    A("s_cselect_b32 s32, 16, -16")
    A("s_lshl_b32 s31, s32, 4")
    A("v_mul_lo_u32 v3, s32, v1")
    A(f"v_mul_u32_u24 v4, 5120, v2"); A(f"v_add_u32 v3, v3, v4")
    A("s_lshl_b32 s33, s29, 4")
    A(f"v_add_u32 v{vZ}, s33, v3")
    A("s_cmp_eq_u32 s24, 4"); A("s_cselect_b32 s33, 5120, 0")
    A("v_cmp_eq_u32 vcc, 0, v1"); A("v_mov_b32 v5, s33"); A("v_cndmask_b32 v5, 0, v5, vcc"); A(f"v_sub_u32 v{vZ0}, v{vZ}, v5")
    A(f"s_mul_i32 s34, s28, {32*5120}"); A(f"s_add_u32 s34, s34, {Z}")
    A(f"s_mul_i32 s35, {wave}, {2*4*5120}"); A("s_add_u32 s34, s34, s35")
    A(f"s_mul_i32 s35, {wave}, 10240")
    for qq in range(2):
        for ct in range(5):
            A(f"s_mul_i32 s36, s31, {ct}"); A("s_add_u32 s36, s36, s34")
            if qq: A(f"s_add_u32 s36, s36, {4*5120}")
            A(f"s_add_u32 m0, s35, {(qq*5+ct)*1024}")
            A(f"buffer_load_dwordx4 v{vZ0 if ct == 0 else vZ}, {ws}, s36 offen lds{ld_aux}", tag='z')
    A("v_mul_u32_u24 v5, 163840, v1"); A("v_lshl_add_u32 v13, v2, 3, v5")
    A(f"s_lshl_b32 s37, s23, 2"); A(f"s_add_u32 s37, s37, {wave}"); A("s_mov_b32 s38, s37")
    A("s_lshl_b32 s37, s37, 4"); A("s_add_u32 s37, s37, s22"); A("s_mul_i32 s37, s37, 1280"); A("s_mul_i32 s39, s24, 160"); A("s_add_u32 s37, s37, s39")
    if x_off: A(f"s_add_u32 s37, s37, {x_off}")
    for ct in range(5):
        A(f"buffer_load_dwordx2 v[{RES+2*ct}:{RES+2*ct+1}], v13, {x_srd}, s37 offen offset:{ct*32}{ld_aux}", tag='res')
    if do_cs:
        A(f"s_cmp_ge_u32 s21, 108"); A(f"s_cbranch_scc1 {pfx}_nocs"); A(f"s_cmp_lg_u32 {wave}, 0"); A(f"s_cbranch_scc1 {pfx}_nocs")
        A("v_and_b32 v14, 31, v0"); A("v_lshlrev_b32 v14, 2, v14"); A("s_lshl_b32 s39, s21, 7"); A(f"s_add_u32 s40, s39, {CSP}")
        for k in range(5):
            A(f"buffer_load_dword v{20+k}, v14, {ws}, s40 offen", raw=True); A(f"s_add_u32 s40, s40, {108*128}")
        A("s_waitcnt vmcnt(0)", raw=True)
        A("v_add_f32 v20, v20, v21"); A("v_add_f32 v22, v22, v23"); A("v_add_f32 v20, v20, v24"); A("v_add_f32 v20, v20, v22")
        A(f"s_add_u32 s39, s39, {CS}")
        A(f"buffer_store_dword v20, v14, {ws}, s39 offen{st_aux}", raw=True)
        A("s_waitcnt vmcnt(0)", raw=True)
        A.label(f"{pfx}_nocs")
    a2_consts(A, vB, wave)
    A.wait_vm('z'); A("s_barrier")
    if diag: stamp_mid(A, 0)
    def reads(q):
        return [f"ds_read_b128 v[{FA+20*(q%2)+4*ct}:{FA+20*(q%2)+4*ct+3}], v{vL} offset:{(q*5+ct)*1024}" for ct in range(5)]
    for x in reads(0): A(x)
    for q in range(8):
        rl = reads(q + 1) if q < 7 else []
        for ct in range(5):
            a = ACC + 4 * ct; c = "0" if q == 0 else f"v[{a}:{a+3}]"; f = FA + 20 * (q % 2) + 4 * ct
            A(f"v_mfma_f32_16x16x32_bf16 v[{a}:{a+3}], v[{f}:{f+3}], v[{vB+4*q}:{vB+4*q+3}], {c}")
            if rl: A(rl.pop(0))
    if diag: stamp_mid(A, 1)
    A("s_cmp_eq_u32 s24, 0"); A("s_cselect_b32 s40, 0, 1")
    A("v_mov_b32 v6, 0"); A("v_or_b32 v5, s40, v2"); A("v_cmp_eq_u32 vcc, 0, v5"); A(f"v_cndmask_b32 v{ACC}, v{ACC}, v6, vcc")
    A("v_mov_b32 v16, 0"); A("v_mov_b32 v17, 0")
    for ct in range(5):
        a = ACC + 4 * ct
        for p in range(2):
            rr = RES + 2 * ct + p
            A(f"v_lshlrev_b32 v14, 16, v{rr}"); A(f"v_and_b32 v15, 0xffff0000, v{rr}")
            A(f"v_add_f32 v{a+2*p}, v{a+2*p}, v14"); A(f"v_add_f32 v{a+2*p+1}, v{a+2*p+1}, v15")
            A(f"v_cvt_pk_bf16_f32 v{rr}, v{a+2*p}, v{a+2*p+1}")
            A(f"v_add_f32 v16, v16, v{a+2*p}"); A(f"v_fmac_f32 v17, v{a+2*p}, v{a+2*p}")
            A(f"v_add_f32 v16, v16, v{a+2*p+1}"); A(f"v_fmac_f32 v17, v{a+2*p+1}, v{a+2*p+1}")
    A("v_lshrrev_b32 v3, 1, v2"); A("v_and_b32 v4, 1, v2"); A("v_lshlrev_b32 v5, 4, v1"); A("v_lshl_add_u32 v5, v3, 8, v5"); A("v_lshl_add_u32 v5, v4, 3, v5")
    A("s_mul_i32 s36, s22, 163840"); A("s_mul_i32 s37, s38, 20480"); A("s_add_u32 s36, s36, s37"); A("s_mul_i32 s37, s24, 2560"); A("s_add_u32 s36, s36, s37"); A(f"s_add_u32 s36, s36, {XF}")
    for ct in range(5):
        A(f"buffer_store_dwordx2 v[{RES+2*ct}:{RES+2*ct+1}], v5, {ws}, s36 offen offset:{ct*512}{st_aux}", tag='xf')
    for v in (16, 17):
        A(f"v_mov_b32 v3, v{v}"); A(f"v_permlane16_swap_b32 v{v}, v3"); A(f"v_add_f32 v{v}, v{v}, v3")
        A(f"v_mov_b32 v3, v{v}"); A(f"v_permlane32_swap_b32 v{v}, v3"); A(f"v_add_f32 v{v}, v{v}, v3")
    A("s_lshl_b32 s36, s22, 13"); A("s_lshr_b32 s37, s24, 1"); A("s_lshl_b32 s37, s37, 11"); A("s_add_u32 s36, s36, s37")
    A("s_lshl_b32 s37, s38, 8"); A("s_add_u32 s36, s36, s37"); A("s_and_b32 s37, s24, 1"); A("s_lshl_b32 s37, s37, 3"); A("s_add_u32 s36, s36, s37"); A(f"s_add_u32 s36, s36, {ST}")
    A("v_lshlrev_b32 v5, 4, v1")
    A(f"buffer_store_dwordx2 v[16:17], v5, {ws}, s36 offen{st_aux}", tag='st')

def kernel_A2(name, Z, from_x2, XF, ST, do_cs, diag=False):
    A = Asm()
    prologue(A, 256, f"{name}_exit", [] if from_x2 else [(8, 'x', S*D*2)])
    if diag: stamp_begin(A)
    phase_A2(A, Z, SRD_WS if from_x2 else 's[8:11]', X2 if from_x2 else 0, XF, ST, do_cs, diag=diag, pfx=name)
    if diag: stamp_end(A, 2)
    A.label(f"{name}_exit")
    return kernel_block(name, A.text(), vgpr=256, sgpr=80)
```

```python
from common import *

LOG2E = 1.4426950408889634
import struct
def f2u(x): return struct.unpack('<I', struct.pack('<f', x))[0]

class B1Cfg:
    passes = [[0,1,2,3],[4,5],[6]]
    R = 8
    RA = 3
    fill = 4
    xpre = 24

def b1_roles(A, wg='s21'):
    A(f"s_and_b32 s25, {wg}, 7"); A(f"s_lshr_b32 s26, {wg}, 3")
    A("s_and_b32 s22, s25, 1"); A("s_lshl_b32 s22, s22, 3"); A("s_lshr_b32 s27, s26, 2"); A("s_add_u32 s22, s22, s27")
    A("s_lshr_b32 s23, s25, 1"); A("s_lshl_b32 s23, s23, 2"); A("s_and_b32 s27, s26, 3"); A("s_add_u32 s23, s23, s27")
    A("s_mul_i32 s24, s23, 7"); A("s_min_u32 s24, s24, 101")

def phase_B1(A, XF, ST, HH, cfg=B1Cfg, wave='s20', ld_aux='', st_aux='', roles=True, diag=False):
    ws = SRD_WS
    if roles: b1_roles(A)
    CSL = cfg.R * 16384
    WB = 32
    NB = cfg.RA + 1
    ACC = [64, 128]
    vNm, vStd, vR1 = 56, 57, 58
    vX, vW, vHH, vCS = 10, 11, 12, 13
    CSR = 200
    OUT = [216, 220]
    A("v_and_b32 v1, 31, v0"); A("v_lshrrev_b32 v2, 5, v0")
    A("v_lshrrev_b32 v3, 4, v1"); A("v_and_b32 v4, 15, v0")
    A("v_lshlrev_b32 v5, 4, v4")
    A(f"v_lshl_add_u32 v5, v2, 8, v5")
    A(f"v_mul_u32_u24 v6, 20480, v3"); A(f"v_add_u32 v{vX}, v6, v5")
    A(f"v_lshl_add_u32 v{vHH}, v3, 10, v5")
    A(f"v_lshlrev_b32 v{vW}, 4, v0")
    A(f"v_lshlrev_b32 v{vCS}, 4, v2"); A(f"v_add_u32 v{vCS}, {CSL}, v{vCS}")
    A(f"s_mul_i32 s28, s22, 163840"); A(f"s_mul_i32 s29, {wave}, 40960"); A("s_add_u32 s28, s28, s29"); A(f"s_add_u32 s28, s28, {XF}")
    A(f"s_mul_i32 s30, s24, 40960"); A(f"s_lshl_b32 s29, {wave}, 10"); A("s_add_u32 s30, s30, s29"); A(f"s_add_u32 s30, s30, {W1F}")
    A(f"s_mul_i32 s31, s22, 442368"); A(f"s_lshr_b32 s29, {wave}, 1"); A("s_mul_i32 s29, s29, 221184"); A("s_add_u32 s31, s31, s29")
    A(f"s_and_b32 s29, {wave}, 1"); A("s_lshl_b32 s29, s29, 11"); A("s_add_u32 s31, s31, s29"); A(f"s_add_u32 s31, s31, {HH}")
    for P in (1, 2, 3, 4): A(f"s_mul_i32 s{32+P}, {wave}, {P*1024}")
    A(f"v_lshlrev_b32 v7, 4, v1")
    A(f"v_lshl_add_u32 v7, v2, 12, v7")
    A(f"s_lshl_b32 s29, s22, 13"); A(f"s_lshl_b32 s37, {wave}, 9"); A("s_add_u32 s29, s29, s37"); A(f"s_add_u32 s29, s29, {ST}")
    A(f"buffer_load_dwordx4 v[16:19], v7, {ws}, s29 offen{ld_aux}", tag='st')
    A(f"buffer_load_dwordx4 v[20:23], v7, {ws}, s29 offen offset:2048{ld_aux}", tag='st')
    A(f"v_lshlrev_b32 v8, 2, v0")
    A(f"s_lshl_b32 s29, s24, 7"); A(f"s_lshl_b32 s37, {wave}, 8"); A("s_add_u32 s29, s29, s37"); A(f"s_add_u32 s29, s29, {CS}")
    A(f"s_add_u32 m0, s37, {CSL}")
    A(f"buffer_load_dword v8, {ws}, s29 offen lds", tag='cs')
    stages = []
    for pi, tiles in enumerate(cfg.passes):
        P = len(tiles); KS = 4 if P >= 3 else 8
        for q0 in range(0, 40, KS): stages.append(dict(P=P, tiles=tiles, q0=q0, KS=KS, pi=pi))
    NSTG = len(stages)
    def dma_stage(s):
        st = stages[s]; out = []
        slot = (s % cfg.R) * 16384
        for rep in range(st['KS'] // 4):
            for ti, t in enumerate(st['tiles']):
                ldsoff = slot + (rep * 4 * st['P'] + ti) * 1024
                goff = (t * 40 + st['q0'] + 4 * rep) * 1024
                out.append([f"s_add_u32 m0, s{32+st['P']}, {ldsoff}", f"s_add_u32 s38, s30, {goff}",
                            (f"buffer_load_dwordx4 v{vW}, {ws}, s38 offen lds", f"w{s}")])
        return out
    xdone = set(); wdone = set(); wcnt = {}
    def emit(x):
        if isinstance(x, tuple):
            A(x[0], tag=x[1])
            if x[1].startswith('x'): xdone.add(int(x[1][1:]))
            if x[1].startswith('w'):
                wcnt[x[1]] = wcnt.get(x[1], 0) + 1
                sidx = int(x[1][1:])
                if wcnt[x[1]] == stages[sidx]['P'] * stages[sidx]['KS'] // 4: wdone.add(sidx)
        else: A(x)
    def xload(q):
        return [f"s_add_u32 s39, s28, {(q // 8) * 4096}",
                (f"buffer_load_dwordx4 a[{4*q}:{4*q+3}], v{vX}, {ws}, s39 offen offset:{(q % 8) * 512}{ld_aux}", f"x{q}")]
    frags = []
    for s, st in enumerate(stages):
        slot = (s % cfg.R) * 16384
        for qq in range(st['KS']):
            for ti, t in enumerate(st['tiles']):
                frags.append((s, slot + (qq * st['P'] + ti) * 1024, t, st['q0'] + qq))
    NF = len(frags)
    xq = 0
    for s in range(min(cfg.R - 2, NSTG)):
        for _ in range(4):
            if xq < cfg.xpre:
                for x in xload(xq): emit(x)
                xq += 1
        for d in dma_stage(s):
            for x in d: emit(x)
    A("v_add_f32 v16, v16, v18"); A("v_add_f32 v17, v17, v19"); A("v_add_f32 v20, v20, v22"); A("v_add_f32 v21, v21, v23")
    A("v_add_f32 v16, v16, v20"); A("v_add_f32 v17, v17, v21")
    A("v_mov_b32 v18, v16"); A("v_mov_b32 v19, v17")
    A("v_permlane32_swap_b32 v16, v18"); A("v_permlane32_swap_b32 v17, v19")
    A("v_add_f32 v16, v16, v18"); A("v_add_f32 v17, v17, v19")
    A(f"v_mul_f32 v16, {f2u(1.0/640):#x}, v16"); A(f"v_mul_f32 v17, {f2u(1.0/640):#x}, v17")
    A(f"v_fma_f32 v17, -v16, v16, v17")
    A(f"v_add_f32 v17, {f2u(1e-5):#x}, v17")
    A(f"v_sqrt_f32 v{vStd}, v17")
    A(f"v_sub_f32 v{vNm}, 0, v16")
    A(f"v_rcp_f32 v{vR1}, v{vStd}")
    A(f"v_mul_f32 v{vR1}, {f2u(-LOG2E):#x}, v{vR1}")
    dmaq = []; fillq = []
    def acc(pi, ti): return ACC[pi % 2] + 16 * ti
    def epilogue(pi, ti, t, idx):
        a = acc(pi, ti); L = []
        for i in range(4): L.append(f"ds_read_b128 v[{CSR+4*i}:{CSR+4*i+3}], v{vCS} offset:{t*128 + i*32}")
        for r in range(8): L.append(f"v_fma_f32 v{a+r}, v{vNm}, v{CSR+r}, v{a+r}")
        for r in range(8): L.append(f"v_mul_f32 v{a+r}, v{vR1}, v{a+r}")
        for r in range(8): L.append(f"v_exp_f32 v{a+r}, v{a+r}")
        for r in range(8): L.append(f"v_fma_f32 v{a+8+r}, v{vNm}, v{CSR+8+r}, v{a+8+r}")
        for r in range(8): L.append(f"v_fma_f32 v{a+r}, v{a+r}, v{vStd}, v{vStd}")
        for r in range(8): L.append(f"v_rcp_f32 v{a+r}, v{a+r}")
        L.append(f"s_add_u32 s40, s24, {t}"); L.append("s_lshr_b32 s41, s40, 1"); L.append("s_lshl_b32 s41, s41, 12")
        L.append("s_and_b32 s40, s40, 1"); L.append("s_lshl_b32 s40, s40, 9"); L.append("s_add_u32 s40, s40, s41"); L.append("s_add_u32 s40, s40, s31")
        for r in range(8): L.append(f"v_mul_f32 v{a+8+r}, v{a+8+r}, v{a+r}")
        o = OUT[idx % 2]
        for r in range(4): L.append(f"v_cvt_pk_bf16_f32 v{o+r}, v{a+8+2*r}, v{a+8+2*r+1}")
        L.append((f"buffer_store_dwordx4 v[{o}:{o+3}], v{vHH}, {ws}, s40 offen{st_aux}", 'hh'))
        return L
    def read_frag(f):
        s, addr, t, q = frags[f]
        b = WB + 4 * (f % NB)
        assert addr < 65536 * 2
        reg = vW
        if addr < 65536: A(f"ds_read_b128 v[{b}:{b+3}], v{vW} offset:{addr}", tag='wf')
        else: A(f"ds_read_b128 v[{b}:{b+3}], v14 offset:{addr-65536}", tag='wf')
    A(f"v_add_u32 v14, 0x10000, v{vW}")
    cur_stage = -1
    def enter_stage(s):
        nonlocal xq
        assert s in wdone, s
        A.wait_vm([f"w{s}"] + (['cs'] if s == 0 else []))
        A("s_barrier")
        if diag and s == 0: stamp_mid(A, 0)
        nxt = s + cfg.R - 2
        if nxt < NSTG:
            for d in dma_stage(nxt): dmaq.append(d)
        for _ in range(4):
            if xq < 40:
                dmaq.append(xload(xq)); xq += 1
    def pre_read(f):
        nonlocal cur_stage
        if f >= NF: return
        if frags[f][0] != cur_stage:
            cur_stage = frags[f][0]; enter_stage(cur_stage)
        read_frag(f)
    for f in range(min(cfg.RA, NF)): pre_read(f)
    tidx = 0
    for f in range(NF):
        s, addr, t, q = frags[f]
        st = stages[s]; pi = st['pi']; ti = st['tiles'].index(t)
        a = acc(pi, ti); b = WB + 4 * (f % NB)
        c = "0" if q == 0 else f"v[{a}:{a+15}]"
        assert q in xdone, q
        A(f"v_mfma_f32_32x32x16_bf16 v[{a}:{a+15}], v[{b}:{b+3}], a[{4*q}:{4*q+3}], {c}")
        pre_read(f + cfg.RA)
        if dmaq:
            for x in dmaq.pop(0): emit(x)
        n = cfg.fill
        while fillq and n > 0:
            x = fillq.pop(0); emit(x); n -= 1
        last_of_pass = (f + 1 == NF) or (stages[frags[f+1][0]]['pi'] != pi)
        if last_of_pass:
            while fillq: emit(fillq.pop(0))
            if diag: stamp_mid(A, 1 + pi)
            for ti2, t2 in enumerate(st['tiles']):
                fillq += epilogue(pi, ti2, t2, tidx); tidx += 1
    while dmaq:
        for x in dmaq.pop(0): emit(x)
    while fillq: emit(fillq.pop(0))

def kernel_B1(name, XF, ST, HH, cfg=B1Cfg, diag=False):
    A = Asm()
    prologue(A, 256, f"{name}_exit", [])
    if diag: stamp_begin(A)
    phase_B1(A, XF, ST, HH, cfg, diag=diag)
    if diag: stamp_end(A, 1 + len(cfg.passes))
    A.label(f"{name}_exit")
    return kernel_block(name, A.text(), vgpr=512, sgpr=80, accum=256)
```

```python
from common import *

def tile_roles(A, wg='s21'):
    A(f"s_and_b32 s25, {wg}, 7"); A(f"s_lshr_b32 s26, {wg}, 3")
    A("s_and_b32 s22, s25, 3"); A("s_lshl_b32 s22, s22, 2"); A("s_lshr_b32 s27, s26, 3"); A("s_add_u32 s22, s22, s27")
    A("s_lshr_b32 s23, s26, 2"); A("s_and_b32 s23, s23, 1")
    A("s_lshr_b32 s24, s25, 2"); A("s_lshl_b32 s24, s24, 2"); A("s_and_b32 s27, s26, 3"); A("s_add_u32 s24, s24, s27")

class B2Cfg:
    depth = 6

def phase_B2(A, HH, XF, out_srd, out_off, cfg=B2Cfg, wave='s20', ld_aux='', st_aux='', roles=True, pfx='b2', diag=False):
    ws = SRD_WS
    if roles: tile_roles(A)
    NB = cfg.depth + 1
    ACC = 64
    vL, vRes, vOut = 10, 11, 12
    RES = 160
    A(f"v_lshlrev_b32 v{vL}, 4, v0")
    A("v_and_b32 v1, 15, v0"); A("v_lshrrev_b32 v2, 4, v0")
    A("v_lshrrev_b32 v3, 1, v2"); A("v_and_b32 v4, 1, v2")
    A("v_lshlrev_b32 v5, 4, v1"); A("v_lshl_add_u32 v5, v3, 8, v5"); A(f"v_lshl_add_u32 v{vRes}, v4, 3, v5")
    A("v_mul_u32_u24 v5, 163840, v1"); A(f"v_lshl_add_u32 v{vOut}, v2, 3, v5")
    A(f"s_mul_i32 s28, {wave}, 14"); A(f"s_mul_i32 s29, {wave}, 13"); A("s_add_u32 s29, s29, 2")
    A(f"s_cmp_lt_u32 {wave}, 2"); A("s_cselect_b32 s28, s28, s29")
    A("s_mul_i32 s29, s24, 54"); A("s_add_u32 s29, s29, s28"); A("s_mul_i32 s29, s29, 5120"); A(f"s_add_u32 s29, s29, {WDF}")
    A("s_lshl_b32 s30, s22, 1"); A("s_add_u32 s30, s30, s23"); A("s_mul_i32 s30, s30, 221184"); A("s_lshl_b32 s31, s28, 12"); A("s_add_u32 s30, s30, s31"); A(f"s_add_u32 s30, s30, {HH}")
    for u in range(4):
        A(f"s_add_u32 s31, {wave}, {u}"); A("s_and_b32 s31, s31, 3"); A("s_lshl_b32 s31, s31, 10"); A(f"s_add_u32 s{32+u}, s30, s31")
    A("s_mul_i32 s36, s22, 163840"); A("s_lshl_b32 s37, s23, 2"); A(f"s_add_u32 s37, s37, {wave}"); A("s_mov_b32 s43, s37")
    A("s_mul_i32 s37, s37, 20480"); A("s_add_u32 s36, s36, s37"); A("s_mul_i32 s37, s24, 2560"); A("s_add_u32 s36, s36, s37"); A(f"s_add_u32 s36, s36, {XF}")
    for ct in range(5):
        A(f"buffer_load_dwordx2 v[{RES+2*ct}:{RES+2*ct+1}], v{vRes}, {ws}, s36 offen offset:{ct*512}{ld_aux}", tag='res')
    def buf(ks, i): return (ks % NB) * 36 + 4 * i
    def loads(ks):
        L = []
        L.append([f"s_add_u32 s38, s29, {ks*5120}"] )
        for ct in range(5):
            b = buf(ks, ct)
            if ct < 4: L.append([f"buffer_load_dwordx4 a[{b}:{b+3}], v{vL}, {ws}, s38 offen offset:{ct*1024}"])
            else: L.append([f"s_add_u32 s39, s38, 4096", f"buffer_load_dwordx4 a[{b}:{b+3}], v{vL}, {ws}, s39 offen"])
        for u in range(4):
            b = buf(ks, 5 + u)
            L.append([f"s_add_u32 s40, s{32+u}, {ks*4096}", f"buffer_load_dwordx4 a[{b}:{b+3}], v{vL}, {ws}, s40 offen{ld_aux}"])
        return L
    NK = 14
    for ks in range(min(cfg.depth, NK)):
        for l in loads(ks):
            for x in l: A(x)
    if diag: stamp_mid(A, 0)
    q = []
    for ks in range(NK):
        if ks + cfg.depth < NK: q += loads(ks + cfg.depth)
        if ks == NK - 1:
            A(f"s_cmp_ge_u32 {wave}, 2"); A(f"s_cbranch_scc1 {pfx}_skip")
        cnt = 0
        for ct in range(5):
            for u in range(4):
                a = ACC + (u * 5 + ct) * 4
                c = "0" if ks == 0 else f"v[{a}:{a+3}]"
                wa = buf(ks, ct); hb = buf(ks, 5 + u)
                A(f"v_mfma_f32_16x16x32_bf16 v[{a}:{a+3}], a[{wa}:{wa+3}], a[{hb}:{hb+3}], {c}")
                cnt += 1
                if q and cnt % 2 == 0:
                    for x in q.pop(0): A(x)
        while q:
            for x in q.pop(0): A(x)
    A.label(f"{pfx}_skip")
    A("s_waitcnt vmcnt(0)")
    if diag: stamp_mid(A, 1)
    A("s_nop 7")
    for u in range(1, 4):
        A(f"s_add_u32 s31, {wave}, {u}"); A("s_and_b32 s31, s31, 3"); A("s_mul_i32 s31, s31, 15360"); A(f"s_add_u32 s31, s31, {(u-1)*5120}")
        A(f"v_add_u32 v13, s31, v{vL}")
        for ct in range(5):
            a = ACC + (u * 5 + ct) * 4
            A(f"ds_write_b128 v13, v[{a}:{a+3}] offset:{ct*1024}")
    A.drain(vm=False); A("s_barrier")
    A(f"s_mul_i32 s31, {wave}, 15360"); A(f"v_add_u32 v13, s31, v{vL}")
    T = 176
    for rk in range(3):
        for ct in range(5):
            A(f"ds_read_b128 v[{T+(rk*5+ct)*4}:{T+(rk*5+ct)*4+3}], v13 offset:{rk*5120+ct*1024}")
    for rk in range(3):
        for ct in range(5):
            for r in range(4):
                a = ACC + ct * 4 + r
                A(f"v_add_f32 v{a}, v{a}, v{T+(rk*5+ct)*4+r}")
    for ct in range(5):
        a = ACC + ct * 4
        for p in range(2):
            rr = RES + 2 * ct + p
            A(f"v_lshlrev_b32 v14, 16, v{rr}"); A(f"v_and_b32 v15, 0xffff0000, v{rr}")
            A(f"v_add_f32 v{a+2*p}, v{a+2*p}, v14"); A(f"v_add_f32 v{a+2*p+1}, v{a+2*p+1}, v15")
            A(f"v_cvt_pk_bf16_f32 v{rr}, v{a+2*p}, v{a+2*p+1}")
    A("s_lshl_b32 s37, s43, 4"); A("s_add_u32 s37, s37, s22"); A("s_mul_i32 s37, s37, 1280"); A("s_mul_i32 s38, s24, 160"); A("s_add_u32 s37, s37, s38")
    if out_off: A(f"s_add_u32 s37, s37, {out_off}")
    for ct in range(5):
        A(f"buffer_store_dwordx2 v[{RES+2*ct}:{RES+2*ct+1}], v{vOut}, {out_srd}, s37 offen offset:{ct*32}{st_aux}", tag='out')

def kernel_B2(name, HH, XF, to_out, cfg=B2Cfg, diag=False):
    A = Asm()
    prologue(A, 256, f"{name}_exit", [(8, 'out', S*D*2)] if to_out else [])
    if diag: stamp_begin(A)
    phase_B2(A, HH, XF, 's[8:11]' if to_out else SRD_WS, 0 if to_out else X2, cfg, pfx=name, diag=diag)
    if diag: stamp_end(A, 2)
    A.label(f"{name}_exit")
    return kernel_block(name, A.text(), vgpr=512, sgpr=80, accum=256)
```

```python
from common import *

def phase_P(A, pfx, srd_g='s[8:11]', srd_u='s[12:15]', srd_d='s[16:19]', wg='s21', wave='s20', aux=''):
    ws = SRD_WS
    A(f"s_cmp_ge_u32 {wg}, 243"); A(f"s_cbranch_scc1 {pfx}_done")
    A(f"s_cmp_ge_u32 {wg}, 135"); A(f"s_cbranch_scc1 {pfx}_wd")
    s_udiv(A, 's22', wg, 5, 256)
    A(f"s_mul_i32 s23, s22, 5"); A(f"s_sub_u32 s23, {wg}, s23")
    A("v_lshrrev_b32 v1, 3, v0")
    A("v_and_b32 v2, 7, v0")
    A("v_and_b32 v3, 2, v1")
    A("v_xor_b32 v4, v2, v3")
    A("v_xor_b32 v5, 4, v4")
    A("v_mul_u32_u24 v6, 3456, v1")
    A("v_lshl_add_u32 v4, v4, 4, v6")
    A("v_lshl_add_u32 v5, v5, 4, v6")
    A(f"s_lshl_b32 s24, s23, 7"); A(f"s_lshl_b32 s25, {wave}, 5"); A("s_add_u32 s24, s24, s25")
    A("s_mul_i32 s24, s24, 3456"); A("s_lshl_b32 s25, s22, 7"); A("s_add_u32 s24, s24, s25")
    A(f"s_lshl_b32 s26, {wave}, 12")
    for i in range(4):
        A(f"s_add_u32 m0, s26, {i*1024}")
        A(f"s_add_u32 s27, s24, {i*8*3456}")
        A(f"buffer_load_dwordx4 v4, {srd_g}, s27 offen lds", tag='pdma')
        A(f"s_add_u32 m0, s26, {16384+i*1024}")
        A(f"buffer_load_dwordx4 v5, {srd_u}, s27 offen lds", tag='pdma')
    A("v_lshrrev_b32 v1, 4, v0")
    A("v_and_b32 v2, 1, v1")
    A("v_lshrrev_b32 v3, 1, v1")
    A("v_bfe_u32 v6, v0, 2, 2")
    A("v_and_b32 v7, 3, v0")
    A("v_lshl_add_u32 v8, v3, 3, v6")
    A("v_lshlrev_b32 v8, 7, v8")
    A("v_lshl_add_u32 v8, v2, 14, v8")
    A("v_and_b32 v9, 1, v7")
    A(f"s_lshl_b32 s28, {wave}, 1")
    A("v_add_u32 v9, s28, v9")
    A("v_and_b32 v10, 2, v6")
    A("v_lshl_or_b32 v10, v2, 2, v10")
    A("v_xor_b32 v9, v9, v10")
    A("v_lshl_add_u32 v8, v9, 4, v8")
    A("v_lshrrev_b32 v7, 1, v7")
    A("v_lshl_add_u32 v8, v7, 3, v8")
    A(f"s_lshl_b32 s29, s22, 2"); A(f"s_add_u32 s29, s29, {wave}")
    A("s_mul_i32 s30, s29, 40"); A("s_lshl_b32 s31, s23, 3"); A("s_add_u32 s30, s30, s31"); A("s_lshl_b32 s30, s30, 10")
    A(f"s_add_u32 s30, s30, {W1F}")
    A("v_lshlrev_b32 v11, 4, v0")
    A("v_mov_b32 v12, 0")
    A("s_mov_b32 s32, 0x3f803f80")
    A.wait_vm('pdma'); A("s_barrier")
    for q in range(8):
        r = 16 + 4 * q
        A(f"ds_read_b64_tr_b16 v[{r}:{r+1}], v8 offset:{q*2048}")
        A(f"ds_read_b64_tr_b16 v[{r+2}:{r+3}], v8 offset:{q*2048+512}")
    for q in range(8):
        r = 16 + 4 * q
        A(f"s_add_u32 s31, s30, {q*1024}")
        A(f"buffer_store_dwordx4 v[{r}:{r+3}], v11, {ws}, s31 offen{aux}", tag='pst')
        for j in range(4): A(f"v_dot2c_f32_bf16 v12, s32, v{r+j}")
    A("v_mov_b32 v13, v12")
    A("v_permlane32_swap_b32 v12, v13")
    A("v_add_f32 v12, v12, v13")
    A("s_mul_i32 s30, s23, 108"); A("s_add_u32 s30, s30, s29"); A("s_lshl_b32 s30, s30, 7"); A(f"s_add_u32 s30, s30, {CSP}")
    A("v_and_b32 v13, 31, v0"); A("v_lshlrev_b32 v13, 2, v13")
    A(f"buffer_store_dword v12, v13, {ws}, s30 offen{aux}", tag='pst')
    A(f"s_branch {pfx}_done")
    A.label(f"{pfx}_wd")
    A(f"s_sub_u32 s22, {wg}, 135")
    A("s_mul_i32 s24, s22, 20480")
    for i in range(5):
        A(f"s_mul_i32 s25, {wave}, 5"); A(f"s_add_u32 s25, s25, {i}"); A("s_lshl_b32 s26, s25, 6")
        A("v_add_u32 v1, s26, v0")
        v_udiv(A, 'v2', 'v1', 80, 1280)
        A("v_mul_u32_u24 v3, 80, v2"); A("v_sub_u32 v3, v1, v3")
        A("v_and_b32 v4, 3, v2"); A("v_bfe_u32 v5, v2, 3, 1"); A("v_lshl_or_b32 v4, v5, 2, v4")
        A("v_lshlrev_b32 v4, 1, v4"); A("v_xor_b32 v3, v3, v4")
        A("v_mul_u32_u24 v2, 1280, v2"); A(f"v_lshl_add_u32 v{20+i}, v3, 4, v2")
        A("s_lshl_b32 m0, s25, 10")
        A(f"buffer_load_dwordx4 v{20+i}, {srd_d}, s24 offen lds", tag='pdma')
    A("v_lshrrev_b32 v1, 4, v0"); A("v_lshrrev_b32 v2, 1, v1"); A("v_and_b32 v3, 1, v1")
    A("v_bfe_u32 v6, v0, 2, 2"); A("v_and_b32 v7, 3, v0")
    A("v_lshl_add_u32 v8, v3, 3, v6")
    A("v_lshl_or_b32 v10, v3, 2, v6")
    A("v_lshlrev_b32 v10, 1, v10")
    A("v_mul_u32_u24 v8, 1280, v8")
    A("s_and_b32 s27, s22, 1"); A("s_lshr_b32 s28, s22, 1")
    A("v_and_b32 v11, 31, v0"); A("s_lshl_b32 s29, s27, 5"); A("v_add_u32 v11, s29, v11"); A("v_lshlrev_b32 v11, 4, v11")
    A.wait_vm('pdma'); A("s_barrier")
    for i in range(5):
        A(f"s_mul_i32 s25, {wave}, 10"); A(f"s_add_u32 s25, s25, {2*i}")
        A("v_add_u32 v1, s25, v2")
        A("v_lshrrev_b32 v3, 1, v7"); A("v_lshl_add_u32 v3, v1, 1, v3")
        A("v_xor_b32 v3, v3, v10")
        A("v_lshl_add_u32 v3, v3, 4, v8")
        A("v_and_b32 v4, 1, v7"); A("v_lshl_add_u32 v3, v4, 3, v3")
        r = 24 + 4 * i
        A(f"ds_read_b64_tr_b16 v[{r}:{r+1}], v3")
        A(f"ds_read_b64_tr_b16 v[{r+2}:{r+3}], v3 offset:{4*1280}")
        v_udiv(A, 'v4', 'v1', 5, 40)
        A("v_mul_u32_u24 v5, 5, v4"); A("v_sub_u32 v5, v1, v5")
        A("v_mul_u32_u24 v4, 270, v4"); A("v_add_u32 v4, v4, v5")
        A("s_mul_i32 s26, s28, 5"); A("v_add_u32 v4, s26, v4")
        A(f"v_lshl_add_u32 v{50+i}, v4, 10, v11")
    A(f"s_mov_b32 s26, {WDF}")
    for i in range(5):
        r = 24 + 4 * i
        A(f"buffer_store_dwordx4 v[{r}:{r+3}], v{50+i}, {ws}, s26 offen{aux}", tag='pst')
    A.label(f"{pfx}_done")

def kernel_P(name):
    A = Asm()
    prologue(A, 256, f"{name}_exit", [(8, 'wg', D*F*2), (12, 'wu', D*F*2), (16, 'wd', D*F*2)])
    phase_P(A, name)
    A.label(f"{name}_exit")
    return kernel_block(name, A.text(), vgpr=64, sgpr=64)
```

```python
import sys
from phase_p import *
from phase_a1 import *
from phase_a2 import *
from phase_b1 import *
from phase_b2 import *
NAME = 'interleave_layers__spectral_fnet__glu_gated_glu__prompt'
def header(launches):
    ref = open(f'cdna_kernels/{NAME}.s.ref').read().split('\n')
    hdr = []
    for l in ref:
        if l.startswith('; @launch') or l.startswith('; Override') or l.startswith('; grid=ceil'): continue
        if not l.startswith(';'): break
        hdr.append(l)
    for (k, grid, block, lds) in launches:
        hdr.append(f"; @launch kernel={k} grid=({grid},1,1) block=({block},1,1) lds={lds}")
    return '\n'.join(hdr) + '\n.amdgcn_target "amdgcn-amd-amdhsa--gfx950"\n'
def main(out, diag=False):
    K = []
    K.append(('pre_kernel', kernel_P('pre_kernel'), 32768))
    K.append(('a1a_kernel', kernel_A1('a1a_kernel', False, Z1, diag=diag), 4*36864))
    K.append(('a2a_kernel', kernel_A2('a2a_kernel', Z1, False, X1F, ST1, True, diag=diag), 40960))
    K.append(('b1a_kernel', kernel_B1('b1a_kernel', X1F, ST1, HH1, diag=diag), 8*16384+1024))
    K.append(('b2a_kernel', kernel_B2('b2a_kernel', HH1, X1F, False, diag=diag), 61440))
    K.append(('a1b_kernel', kernel_A1('a1b_kernel', True, Z2, diag=diag), 4*36864))
    K.append(('a2b_kernel', kernel_A2('a2b_kernel', Z2, True, X3F, ST3, False, diag=diag), 40960))
    K.append(('b1b_kernel', kernel_B1('b1b_kernel', X3F, ST3, HH2, diag=diag), 8*16384+1024))
    K.append(('b2b_kernel', kernel_B2('b2b_kernel', HH2, X3F, True, diag=diag), 61440))
    txt = header([(k, 256, 256, lds) for (k, t, lds) in K])
    for (k, t, lds) in K: txt += t
    open(out, 'w').write(txt)
    print(out, len(txt))
if __name__ == '__main__':
    main(sys.argv[1] if len(sys.argv) > 1 else f'cdna_kernels/{NAME}.s')
```

```python
import re

def expand(op):
    op = op.strip()
    neg = op.lstrip('-')
    if neg.startswith('abs(') or neg.startswith('|'):
        neg = neg.replace('abs(', '').replace(')', '').replace('|', '')
    m = re.fullmatch(r'([vas])\[(\d+):(\d+)\]', neg)
    if m:
        return [f"{m.group(1)}{i}" for i in range(int(m.group(2)), int(m.group(3)) + 1)]
    m = re.fullmatch(r'([vas])(\d+)', neg)
    if m:
        return [neg]
    if neg in ('vcc',): return ['vcc_lo', 'vcc_hi']
    if neg in ('vcc_lo', 'vcc_hi', 'm0', 'scc'): return [neg]
    if neg == 'exec': return ['exec']
    return []

TRANS = ('v_exp_f32', 'v_log_f32', 'v_rcp_f32', 'v_rsq_f32', 'v_sqrt_f32', 'v_sin_f32', 'v_cos_f32', 'v_rcp_iflag_f32')
MFMA_PASSES = {'v_mfma_f32_32x32x16_bf16': 8, 'v_mfma_f32_16x16x32_bf16': 4, 'v_mfma_f32_16x16x16_bf16': 4}

class Ins:
    __slots__ = ('text', 'op', 'reads', 'writes', 'kind', 'tag', 'passes', 'srcC', 'srcAB', 'dpp', 'storedata', 'raw', 'wide')
    def __init__(self, text):
        self.text = text; self.reads = set(); self.writes = set(); self.kind = 'other'; self.tag = None
        self.passes = 0; self.srcC = set(); self.srcAB = set(); self.dpp = False; self.storedata = set(); self.raw = False; self.wide = False
        self.op = ''

def split_ops(s):
    out = []; depth = 0; cur = ''
    for ch in s:
        if ch in '[(': depth += 1
        if ch in '])': depth -= 1
        if ch == ',' and depth == 0:
            out.append(cur.strip()); cur = ''
        else:
            cur += ch
    if cur.strip(): out.append(cur.strip())
    return out

def parse(text):
    ins = Ins(text)
    t = text.split(';')[0].strip()
    if not t or t.endswith(':') or t.startswith('.'):
        ins.kind = 'label' if t.endswith(':') else 'directive'
        return ins
    parts = t.split(None, 1)
    op = parts[0]; ins.op = op
    rest = parts[1] if len(parts) > 1 else ''
    ops = split_ops(rest)
    mods = ''
    if ops:
        last = ops[-1].split()
        ops[-1] = last[0]
        mods = ' '.join(last[1:])
    R = ins.reads; W = ins.writes
    def rd(o): R.update(expand(o))
    def wr(o): W.update(expand(o))
    base = re.sub(r'_(e32|e64|dpp|sdwa)$', '', op)
    if op.startswith('v_mfma'):
        ins.kind = 'mfma'; ins.passes = MFMA_PASSES[op]
        wr(ops[0]); rd(ops[1]); rd(ops[2]); rd(ops[3])
        ins.srcAB = set(expand(ops[1]) + expand(ops[2])); ins.srcC = set(expand(ops[3]))
    elif op.startswith('buffer_load'):
        if 'lds' in mods.split():
            ins.kind = 'dma'; rd(ops[0]); rd(ops[1]); rd(ops[2]); R.add('m0')
        else:
            ins.kind = 'vload'; wr(ops[0]); rd(ops[1]); rd(ops[2]); rd(ops[3])
    elif op.startswith('buffer_store'):
        ins.kind = 'vstore'; rd(ops[0]); rd(ops[1]); rd(ops[2]); rd(ops[3])
        ins.storedata = set(expand(ops[0])); ins.wide = op.endswith('x4') or op.endswith('x3')
    elif op.startswith('buffer_atomic'):
        ins.kind = 'vstore'; rd(ops[0]); rd(ops[1]); rd(ops[2]); rd(ops[3])
        if 'sc0' in mods.split():
            ins.kind = 'vload'; wr(ops[0])
    elif op in ('buffer_inv', 'buffer_wbl2'):
        ins.kind = 'vstore'
    elif op.startswith('global_load'):
        ins.kind = 'vload'; wr(ops[0]); rd(ops[1]); rd(ops[2])
    elif op.startswith('global_store'):
        ins.kind = 'vstore'; rd(ops[0]); rd(ops[1]); rd(ops[2]); ins.storedata = set(expand(ops[1])); ins.wide = op.endswith('x4')
    elif op.startswith('ds_read') or op.startswith('ds_bpermute') or op.startswith('ds_swizzle'):
        ins.kind = 'dsread'; wr(ops[0])
        for o in ops[1:]: rd(o)
    elif op.startswith('ds_write') or op.startswith('ds_add'):
        ins.kind = 'dswrite'
        for o in ops: rd(o)
        ins.storedata = set(expand(ops[1]))
    elif op.startswith('s_load') or op in ('s_memtime', 's_memrealtime'):
        ins.kind = 'smem'; wr(ops[0])
        if len(ops) > 1: rd(ops[1])
    elif op == 's_waitcnt': ins.kind = 'wait'
    elif op == 's_nop': ins.kind = 'nop'
    elif op == 's_barrier': ins.kind = 'barrier'
    elif op.startswith('s_cbranch') or op == 's_branch':
        ins.kind = 'branch'
        if 'scc' in op: R.add('scc')
        if 'vcc' in op: R.update(['vcc_lo', 'vcc_hi'])
        if 'exec' in op: R.add('exec')
    elif op in ('s_endpgm', 's_setprio', 's_sleep'): ins.kind = 'salu'
    elif op == 's_setpc_b64':
        ins.kind = 'branch'; rd(ops[0])
    elif op == 's_getpc_b64':
        ins.kind = 'salu'; wr(ops[0])
    elif op.startswith('s_cmp') or op.startswith('s_bitcmp'):
        ins.kind = 'salu'; W.add('scc')
        for o in ops: rd(o)
    elif op.startswith('s_'):
        ins.kind = 'salu'
        wr(ops[0])
        for o in ops[1:]: rd(o)
        if 'saveexec' in op: W.add('exec'); R.add('exec')
        if op in ('s_cselect_b32', 's_cselect_b64', 's_addc_u32', 's_subb_u32'): R.add('scc')
        if op not in ('s_mov_b32', 's_mov_b64', 's_cselect_b32', 's_cselect_b64', 's_mul_i32', 's_mul_hi_u32', 's_getreg_b32', 's_movk_i32'): W.add('scc')
        if op in ('s_addk_i32', 's_mulk_i32'): rd(ops[0])
    elif op.startswith('v_'):
        ins.kind = 'trans' if base in TRANS else 'valu'
        if 'dpp' in op or 'row_' in mods or 'quad_perm' in mods: ins.dpp = True
        if base.startswith('v_cmp'):
            wr(ops[0])
            for o in ops[1:]: rd(o)
            if base.startswith('v_cmpx'): W.add('exec')
        elif base.startswith('v_permlane') and 'swap' in base:
            wr(ops[0]); wr(ops[1]); rd(ops[0]); rd(ops[1]); ins.kind = 'permlane'
        elif base in ('v_readfirstlane_b32', 'v_readlane_b32'):
            ins.kind = 'readlane'; wr(ops[0])
            for o in ops[1:]: rd(o)
        elif base in ('v_add_co_u32', 'v_sub_co_u32', 'v_addc_co_u32'):
            wr(ops[0]); wr(ops[1])
            for o in ops[2:]: rd(o)
        else:
            wr(ops[0])
            for o in ops[1:]: rd(o)
            if base in ('v_fmac_f32', 'v_dot2c_f32_bf16', 'v_mac_f32', 'v_pk_fmac_f16'): rd(ops[0])
            if base == 'v_cndmask_b32' and len(ops) == 3: R.update(['vcc_lo', 'vcc_hi'])
            if ins.dpp: rd(ops[0])
        R.add('exec')
    else:
        raise ValueError('unknown instruction: ' + text)
    return ins

VM_KINDS = ('vload', 'vstore', 'dma')
DS_KINDS = ('dsread', 'dswrite')

class Asm:
    def __init__(self):
        self.ins = []
    def I(self, text, tag=None, raw=False):
        for line in text.split('\n'):
            line = line.strip()
            if not line: continue
            i = parse(line); i.tag = tag; i.raw = raw
            self.ins.append(i)
    __call__ = I
    def label(self, name): self.I(name + ':')
    def wait_vm(self, tags):
        i = Ins(''); i.kind = 'waitvm'; i.tag = set(tags) if not isinstance(tags, str) else {tags}; self.ins.append(i)
    def wait_ds(self, tags=None):
        i = Ins(''); i.kind = 'waitds'; i.tag = None if tags is None else (set(tags) if not isinstance(tags, str) else {tags}); self.ins.append(i)
    def drain(self, vm=True, ds=True):
        i = Ins(''); i.kind = 'drain'; i.tag = (vm, ds); self.ins.append(i)
    def comment(self, s):
        i = Ins('; ' + s); i.kind = 'directive'; self.ins.append(i)

    def _waits(self):
        out = []
        vm = []
        ds = []
        def emit_wait(nvm=None, nds=None):
            parts = []
            if nvm is not None: parts.append(f"vmcnt({min(nvm,63)})")
            if nds is not None: parts.append(f"lgkmcnt({min(nds,15)})")
            if parts:
                w = parse('s_waitcnt ' + ' '.join(parts)); out.append(w)
        def need(lst, pred):
            for idx in range(len(lst) - 1, -1, -1):
                if pred(lst[idx]): return len(lst) - 1 - idx
            return None
        for i in self.ins:
            if i.kind == 'waitvm':
                n = need(vm, lambda p: p.tag in i.tag)
                if n is not None:
                    emit_wait(nvm=n); del vm[:len(vm) - n]
                continue
            if i.kind == 'waitds':
                n = need(ds, (lambda p: True) if i.tag is None else (lambda p: p.tag in i.tag))
                if n is not None:
                    emit_wait(nds=n); del ds[:len(ds) - n]
                continue
            if i.kind == 'drain':
                a = 0 if (i.tag[0] and vm) else None
                b = 0 if (i.tag[1] and ds) else None
                emit_wait(a, b)
                if i.tag[0]: vm.clear()
                if i.tag[1]: ds.clear()
                continue
            if i.kind in ('label', 'branch') and not i.raw:
                if any(p.writes for p in vm) or any(p.writes for p in ds):
                    pass
            if i.kind == 'wait' and i.raw:
                out.append(i); continue
            if i.kind == 'wait':
                m = re.search(r'vmcnt\((\d+)\)', i.text)
                if m:
                    n = int(m.group(1))
                    if len(vm) > n: del vm[:len(vm) - n]
                m = re.search(r'lgkmcnt\((\d+)\)', i.text)
                if m:
                    n = int(m.group(1))
                    if len(ds) > n: del ds[:len(ds) - n]
                out.append(i); continue
            if not i.raw:
                touch = i.reads | i.writes
                nvm = need(vm, lambda p: bool(p.writes & touch))
                nds = need(ds, lambda p: bool(p.writes & touch))
                if nvm is not None or nds is not None:
                    emit_wait(nvm, nds)
                    if nvm is not None: del vm[:len(vm) - nvm]
                    if nds is not None: del ds[:len(ds) - nds]
            out.append(i)
            if i.kind in VM_KINDS and not i.raw:
                vm.append(i)
                if len(vm) > 63: del vm[:len(vm) - 63]
            if i.kind in DS_KINDS and not i.raw:
                ds.append(i)
                if len(ds) > 15: del ds[:len(ds) - 15]
            if i.kind == 'smem' and not i.raw:
                pass
        return out

    @staticmethod
    def _need_states(p, c):
        n = 0
        valu_like = ('valu', 'trans', 'permlane', 'readlane')
        pv = p.kind in valu_like
        vregs = lambda s: {r for r in s if r[0] in 'va' and r[1:].isdigit()}
        sregs = lambda s: {r for r in s if (r[0] == 's' and r[1:].isdigit()) or r.startswith('vcc')}
        if p.kind == 'mfma':
            D = p.writes
            if c.kind == 'mfma':
                if D & c.srcAB: n = max(n, {4: 8, 8: 12}[p.passes])
                if D & c.srcC:
                    if not (c.srcC == D and c.passes == p.passes): n = max(n, {4: 6, 8: 10}[p.passes])
                if (D & c.writes) and not (c.writes == D and c.srcC == D and c.passes == p.passes):
                    n = max(n, {4: 6, 8: 10}[p.passes])
            elif c.kind in valu_like or c.kind in VM_KINDS or c.kind in DS_KINDS:
                if D & (c.reads | c.writes): n = max(n, {4: 8, 8: 12}[p.passes])
            if c.kind in valu_like and (p.srcC & c.writes): n = max(n, {4: 3, 8: 7}[p.passes])
        if pv:
            wv = vregs(p.writes); ws = sregs(p.writes)
            if c.kind == 'mfma' and (wv & c.reads): n = max(n, 2)
            if c.kind in VM_KINDS and (ws & c.reads): n = max(n, 5)
            if c.kind in valu_like and (ws & c.reads): n = max(n, 2)
            if c.kind == 'readlane' and (wv & c.reads): n = max(n, 1)
            if c.kind == 'readlane' and (ws & c.reads): n = max(n, 4)
            if p.kind == 'trans' and c.kind in valu_like + ('mfma',) and c.kind != 'trans' and (wv & c.reads): n = max(n, 1)
            if p.kind == 'trans' and c.kind == 'trans' and (wv & c.reads): n = max(n, 1)
            if c.dpp and (wv & c.reads): n = max(n, 2)
            if c.kind == 'permlane' and (wv & c.reads): n = max(n, 2)
            if 'exec' in p.writes and c.dpp: n = max(n, 5)
            if 'exec' in p.writes and c.kind == 'mfma': n = max(n, 4)
        if p.op.startswith('v_dot2') and (p.writes & (c.reads | c.writes)):
            if not (c.op == p.op and not (p.writes & (c.reads - c.writes)) ):
                n = max(n, 3)
        if p.kind in ('vstore',) and p.wide and (p.storedata & c.writes):
            n = max(n, 2 if c.kind in valu_like else 1)
        if p.kind == 'dswrite' and len(p.storedata) >= 3 and (p.storedata & c.writes):
            n = max(n, 2 if c.kind in valu_like else 1)
        if p.kind == 'salu' and 'm0' in p.writes and c.kind == 'dma': n = max(n, 1)
        return n

    def _hazards(self, ins):
        out = []
        hist = []
        WINDOW = 14
        nnop = 0
        for c in ins:
            if c.kind in ('directive',):
                out.append(c); continue
            if c.kind == 'label':
                out.append(c); continue
            need = 0
            dist = 0
            for p in reversed(hist):
                r = self._need_states(p, c)
                if r > dist: need = max(need, r - dist)
                dist += (int(p.text.split()[1], 0) + 1) if p.kind == 'nop' else 1
                if dist >= WINDOW: break
            while need > 0:
                k = min(need, 16)
                nop = parse(f's_nop {k-1}'); out.append(nop); hist.append(nop); need -= k; nnop += 1
            out.append(c); hist.append(c)
            if len(hist) > 2 * WINDOW: del hist[:WINDOW]
        self.nnop = nnop
        return out

    def text(self):
        ins = self._hazards(self._waits())
        lines = []
        for i in ins:
            if i.kind == 'label': lines.append(i.text)
            else: lines.append('    ' + i.text)
        return '\n'.join(lines) + '\n'

def kernel_block(name, body, vgpr, sgpr=100, accum=None):
    if accum is None: accum = min(256, (vgpr + 3) // 4 * 4)
    return f""".text
.globl {name}
.p2align 8
.type {name},@function
{name}:
{body}    s_endpgm
.section .rodata,"a"
.p2align 6
.amdhsa_kernel {name}
  .amdhsa_next_free_vgpr {vgpr}
  .amdhsa_next_free_sgpr {sgpr}
  .amdhsa_accum_offset {accum}
  .amdhsa_group_segment_fixed_size 0
  .amdhsa_kernarg_size 96
  .amdhsa_user_sgpr_count 2
  .amdhsa_user_sgpr_kernarg_segment_ptr 1
  .amdhsa_system_sgpr_workgroup_id_x 1
.end_amdhsa_kernel
"""
```

```python
import sys, struct
from common import *
def f2u(x): return struct.unpack('<I', struct.pack('<f', x))[0]
LOG2E = 1.4426950408889634
NAME = 'interleave_layers__spectral_fnet__glu_gated_glu__prompt'

sWAVE, sWG = 's20', 's21'
sC, sHALF, sJ = 's70', 's71', 's72'
sC1, sI1, sT0 = 's73', 's74', 's75'
SRD_X, SRD_HRE, SRD_HIM = 's[8:11]', 's[12:15]', 's[16:19]'
SRD_WG, SRD_WU, SRD_WD = 's[76:79]', 's[80:83]', 's[84:87]'
SRD_DBG, SRD_OUT = 's[88:91]', 's[92:95]'
RES = 240
vC16, vS16 = 250, 252
SC1 = ' sc1'
def line(k): return SYNC + 256 * k
L_B  = lambda layer: 0 + 16 * layer
L_C  = lambda layer: 32 + 16 * layer
L_D  = 64
L_AC = 96
L_AR = 104
SPIN_MAX = 1 << 16

class Mega:
    def __init__(self, diag=False, **opt):
        self.A = Asm(); self.diag = diag; self.nst = 0; self.names = []; self.uid = 0
        self.o = dict(b1_passes=[[0,1,2,3],[4,5],[6]], b1_R=8, b1_RA=3, b1_fill=4, b1_pre=6, b2_depth=6, sleep=0)
        self.o.update(opt)
    def lab(self, s):
        self.uid += 1; return f"L{self.uid}_{s}"
    def stamp(self, name):
        if not self.diag: return
        A = self.A; k = self.nst; self.nst += 1; self.names.append(name)
        l = self.lab('st')
        A.drain(vm=False, ds=True)
        A(f"s_cmp_lg_u32 {sWAVE}, 0"); A(f"s_cbranch_scc1 {l}")
        A("s_memrealtime s[58:59]", raw=True); A("s_waitcnt lgkmcnt(0)", raw=True)
        A(f"s_lshl_b32 s60, {sWG}, 7"); A(f"s_add_u32 s60, s60, {STAMP + 4*k}")
        A("v_mov_b32 v254, s58", raw=True); A("v_mov_b32 v255, 0", raw=True)
        A("buffer_store_dword v254, v255, s[96:99], s60 offen", raw=True)
        A.label(l)
    def one_lane(self, body):
        A = self.A; l = self.lab('ol')
        A(f"s_cmp_lg_u32 {sWAVE}, 0"); A(f"s_cbranch_scc1 {l}")
        A("s_mov_b64 exec, 1")
        for x in body: A(x, raw=True)
        A("s_mov_b64 exec, -1")
        A.label(l)
    def arrive(self, soff_code):
        A = self.A
        A.drain(); A("s_waitcnt vmcnt(0)"); A("s_barrier")
        for x in soff_code: A(x)
        self.one_lane(["v_mov_b32 v254, 1", "v_mov_b32 v255, 0", f"buffer_atomic_add v254, v255, {SRD_WS}, s61 offen sc1"])
    def wait_ge(self, srd, soff_code, need, nlanes=1, lane_stride=0, lane_code=None):
        A = self.A; l = self.lab('w'); d = self.lab('wd'); sk = self.lab('ws')
        for x in soff_code: A(x)
        A(f"s_cmp_lg_u32 {sWAVE}, 0"); A(f"s_cbranch_scc1 {sk}")
        if lane_code:
            for x in lane_code: A(x, raw=True)
        else: A("v_mov_b32 v255, 0", raw=True)
        A("s_mov_b32 s62, 0")
        A.label(l)
        A(f"buffer_load_dword v254, v255, {srd}, s61 offen sc1", raw=True)
        A("s_waitcnt vmcnt(0)", raw=True)
        A(f"v_cmp_gt_u32 vcc, {need}, v254", raw=True)
        A("s_add_u32 s62, s62, 1")
        A("s_nop 1", raw=True)
        A("s_cmp_eq_u64 vcc, 0", raw=True); A(f"s_cbranch_scc1 {d}")
        if self.o['sleep']: A(f"s_sleep {self.o['sleep']}")
        A(f"s_cmp_lt_u32 s62, {SPIN_MAX}"); A(f"s_cbranch_scc1 {l}")
        A.label(d)
        A.label(sk)
        A("s_barrier")
    def entry(self):
        A = self.A
        A("s_cmp_ge_u32 s2, 256"); A("s_cbranch_scc1 L_exit")
        load_srd(A, 4, KA['ws'], WS_USED)
        load_srd(A, 8, KA['x'], S*D*2); load_srd(A, 12, KA['hre'], D*D*2); load_srd(A, 16, KA['him'], D*D*2)
        load_srd(A, 76, KA['wg'], D*F*2); load_srd(A, 80, KA['wu'], D*F*2); load_srd(A, 84, KA['wd'], D*F*2)
        load_srd(A, 88, KA['dbg'], 256); load_srd(A, 92, KA['out'], S*D*2)
        A("v_lshrrev_b32 v1, 6, v0"); A("v_and_b32 v0, 63, v0"); A(f"v_readfirstlane_b32 {sWAVE}, v1"); A(f"s_mov_b32 {sWG}, s2")
        A(f"s_and_b32 s25, {sWG}, 7"); A(f"s_lshr_b32 s26, {sWG}, 3")
        A(f"s_and_b32 {sC}, s25, 3"); A(f"s_lshl_b32 {sC}, {sC}, 2"); A("s_lshr_b32 s27, s26, 3"); A(f"s_add_u32 {sC}, {sC}, s27")
        A(f"s_lshr_b32 {sHALF}, s26, 2"); A(f"s_and_b32 {sHALF}, {sHALF}, 1")
        A(f"s_lshr_b32 {sJ}, s25, 2"); A(f"s_lshl_b32 {sJ}, {sJ}, 2"); A("s_and_b32 s27, s26, 3"); A(f"s_add_u32 {sJ}, {sJ}, s27")
        A(f"s_and_b32 {sC1}, s25, 1"); A(f"s_lshl_b32 {sC1}, {sC1}, 3"); A("s_lshr_b32 s27, s26, 2"); A(f"s_add_u32 {sC1}, {sC1}, s27")
        A(f"s_lshr_b32 {sI1}, s25, 1"); A(f"s_lshl_b32 {sI1}, {sI1}, 2"); A("s_and_b32 s27, s26, 3"); A(f"s_add_u32 {sI1}, {sI1}, s27")
        A(f"s_mul_i32 {sT0}, {sI1}, 7"); A(f"s_min_u32 {sT0}, {sT0}, 101")
        A("s_waitcnt lgkmcnt(0)")
        if self.diag:
            A("s_mov_b32 s96, s4"); A("s_mov_b32 s97, s5"); A("s_mov_b32 s98, 0x4000000"); A("s_mov_b32 s99, 0x20000")
        self.stamp('start')
    def code_prefetch(self, nbytes):
        A = self.A
        A("s_getpc_b64 s[30:31]")
        A.label("L_pfpc")
        A("s_mov_b32 s32, s30"); A("s_and_b32 s33, s31, 0xffff"); A(f"s_mov_b32 s34, L_exit-L_pfpc"); A("s_mov_b32 s35, 0x20000")
        n = (nbytes + 32767) // 32768
        A("v_lshlrev_b32 v1, 7, v0"); A(f"s_lshl_b32 s36, {sWAVE}, 13"); A("v_add_u32 v1, s36, v1")
        for i in range(n):
            A(f"buffer_load_dword v{236+i}, v1, s[32:35], 0 offen", raw=True)
            if i + 1 < n: A("v_add_u32 v1, 0x8000, v1")
    def tile_roles(self):
        A = self.A; A(f"s_mov_b32 s22, {sC}"); A(f"s_mov_b32 s23, {sHALF}"); A(f"s_mov_b32 s24, {sJ}")

    def P_pre(self, PB):
        A = self.A; wave = sWAVE; wg = sWG
        self.p_wd = self.lab('pwd'); self.p_e1 = self.lab('pe1')
        A(f"s_cmp_ge_u32 {wg}, 243"); A(f"s_cbranch_scc1 {self.p_e1}")
        A(f"s_cmp_ge_u32 {wg}, 135"); A(f"s_cbranch_scc1 {self.p_wd}")
        s_udiv(A, 's40', wg, 5, 256)
        A(f"s_mul_i32 s41, s40, 5"); A(f"s_sub_u32 s41, {wg}, s41")
        A("v_lshrrev_b32 v1, 3, v0"); A("v_and_b32 v2, 7, v0"); A("v_and_b32 v3, 2, v1")
        A("v_xor_b32 v4, v2, v3"); A("v_xor_b32 v5, 4, v4"); A("v_mul_u32_u24 v6, 3456, v1")
        A("v_lshl_add_u32 v4, v4, 4, v6"); A("v_lshl_add_u32 v5, v5, 4, v6")
        A(f"s_lshl_b32 s42, s41, 7"); A(f"s_lshl_b32 s43, {wave}, 5"); A("s_add_u32 s42, s42, s43")
        A("s_mul_i32 s42, s42, 3456"); A("s_lshl_b32 s43, s40, 7"); A("s_add_u32 s42, s42, s43")
        A(f"s_lshl_b32 s44, {wave}, 12"); A(f"s_add_u32 s44, s44, {PB}")
        for i in range(4):
            A(f"s_add_u32 m0, s44, {i*1024}"); A(f"s_add_u32 s45, s42, {i*8*3456}")
            A(f"buffer_load_dwordx4 v4, {SRD_WG}, s45 offen lds", raw=True)
            A(f"s_add_u32 m0, s44, {16384+i*1024}"); A("s_nop 0", raw=True)
            A(f"buffer_load_dwordx4 v5, {SRD_WU}, s45 offen lds", raw=True)
        A(f"s_branch {self.p_e1}")
        A.label(self.p_wd)
        A(f"s_sub_u32 s40, {wg}, 135"); A("s_mul_i32 s42, s40, 20480")
        for i in range(5):
            A(f"s_mul_i32 s43, {wave}, 5"); A(f"s_add_u32 s43, s43, {i}"); A("s_lshl_b32 s44, s43, 6")
            A("v_add_u32 v1, s44, v0")
            v_udiv(A, 'v2', 'v1', 80, 1280)
            A("v_mul_u32_u24 v3, 80, v2"); A("v_sub_u32 v3, v1, v3")
            A("v_and_b32 v4, 3, v2"); A("v_bfe_u32 v5, v2, 3, 1"); A("v_lshl_or_b32 v4, v5, 2, v4")
            A("v_lshlrev_b32 v4, 1, v4"); A("v_xor_b32 v3, v3, v4")
            A("v_mul_u32_u24 v2, 1280, v2"); A(f"v_lshl_add_u32 v{20+i}, v3, 4, v2")
            A("s_lshl_b32 s44, s43, 10"); A(f"s_add_u32 m0, s44, {PB}"); A("s_nop 0", raw=True)
            A(f"buffer_load_dwordx4 v{20+i}, {SRD_WD}, s42 offen lds", raw=True)
        A.label(self.p_e1)
    def P_main(self, PB, nyounger):
        A = self.A; wave = sWAVE; wg = sWG; ws = SRD_WS
        wd = self.lab('pmwd'); done = self.lab('pmdone')
        A(f"s_waitcnt vmcnt({nyounger})", raw=True); A("s_barrier")
        A(f"s_cmp_ge_u32 {wg}, 243"); A(f"s_cbranch_scc1 {done}")
        A(f"s_cmp_ge_u32 {wg}, 135"); A(f"s_cbranch_scc1 {wd}")
        R = dict(raw=True)
        A("v_lshrrev_b32 v1, 4, v0"); A("v_and_b32 v2, 1, v1"); A("v_lshrrev_b32 v3, 1, v1"); A("v_bfe_u32 v6, v0, 2, 2"); A("v_and_b32 v7, 3, v0")
        A("v_lshl_add_u32 v8, v3, 3, v6"); A("v_lshlrev_b32 v8, 7, v8"); A("v_lshl_add_u32 v8, v2, 14, v8")
        A("v_and_b32 v9, 1, v7"); A(f"s_lshl_b32 s46, {wave}, 1"); A("v_add_u32 v9, s46, v9")
        A("v_and_b32 v10, 2, v6"); A("v_lshl_or_b32 v10, v2, 2, v10"); A("v_xor_b32 v9, v9, v10")
        A("v_lshl_add_u32 v8, v9, 4, v8"); A("v_lshrrev_b32 v7, 1, v7"); A("v_lshl_add_u32 v8, v7, 3, v8"); A(f"v_add_u32 v8, {PB}, v8")
        A(f"s_lshl_b32 s46, s40, 2"); A(f"s_add_u32 s46, s46, {wave}")
        A("s_mul_i32 s47, s46, 40"); A("s_lshl_b32 s48, s41, 3"); A("s_add_u32 s47, s47, s48"); A("s_lshl_b32 s47, s47, 10"); A(f"s_add_u32 s47, s47, {W1F}")
        A("v_lshlrev_b32 v11, 4, v0"); A("v_mov_b32 v12, 0"); A("s_mov_b32 s49, 0x3f803f80")
        for q in range(8):
            r = 64 + 4 * q
            A(f"ds_read_b64_tr_b16 v[{r}:{r+1}], v8 offset:{q*2048}", **R); A(f"ds_read_b64_tr_b16 v[{r+2}:{r+3}], v8 offset:{q*2048+512}", **R)
            if q == 3: A("s_waitcnt lgkmcnt(0)", **R)
        A("s_waitcnt lgkmcnt(0)", **R)
        for q in range(8):
            r = 64 + 4 * q
            A(f"s_add_u32 s48, s47, {q*1024}")
            A(f"buffer_store_dwordx4 v[{r}:{r+3}], v11, {ws}, s48 offen{SC1}", **R)
            for j in range(4): A(f"v_dot2c_f32_bf16 v12, s49, v{r+j}")
        A("v_mov_b32 v13, v12"); A("v_permlane32_swap_b32 v12, v13"); A("v_add_f32 v12, v12, v13")
        A("s_mul_i32 s47, s41, 108"); A("s_add_u32 s47, s47, s46"); A("s_lshl_b32 s47, s47, 7"); A(f"s_add_u32 s47, s47, {CSP}")
        A("v_and_b32 v13, 31, v0"); A("v_lshlrev_b32 v13, 2, v13")
        A(f"buffer_store_dword v12, v13, {ws}, s47 offen{SC1}", **R)
        A(f"s_branch {done}")
        A.label(wd)
        A("v_lshrrev_b32 v1, 4, v0"); A("v_lshrrev_b32 v2, 1, v1"); A("v_and_b32 v3, 1, v1"); A("v_bfe_u32 v6, v0, 2, 2"); A("v_and_b32 v7, 3, v0")
        A("v_lshl_add_u32 v8, v3, 3, v6"); A("v_lshl_or_b32 v10, v3, 2, v6"); A("v_lshlrev_b32 v10, 1, v10"); A("v_mul_u32_u24 v8, 1280, v8"); A(f"v_add_u32 v8, {PB}, v8")
        A("s_and_b32 s46, s40, 1"); A("s_lshr_b32 s47, s40, 1")
        A("v_and_b32 v11, 31, v0"); A("s_lshl_b32 s48, s46, 5"); A("v_add_u32 v11, s48, v11"); A("v_lshlrev_b32 v11, 4, v11")
        for i in range(5):
            A(f"s_mul_i32 s48, {wave}, 10"); A(f"s_add_u32 s48, s48, {2*i}"); A("v_add_u32 v1, s48, v2")
            A("v_lshrrev_b32 v3, 1, v7"); A("v_lshl_add_u32 v3, v1, 1, v3"); A("v_xor_b32 v3, v3, v10"); A("v_lshl_add_u32 v3, v3, 4, v8")
            A("v_and_b32 v4, 1, v7"); A("v_lshl_add_u32 v3, v4, 3, v3")
            r = 64 + 4 * i
            A(f"ds_read_b64_tr_b16 v[{r}:{r+1}], v3", **R); A(f"ds_read_b64_tr_b16 v[{r+2}:{r+3}], v3 offset:{4*1280}", **R)
            v_udiv(A, 'v4', 'v1', 5, 40)
            A("v_mul_u32_u24 v5, 5, v4"); A("v_sub_u32 v5, v1, v5"); A("v_mul_u32_u24 v4, 270, v4"); A("v_add_u32 v4, v4, v5")
            A("s_mul_i32 s48, s47, 5"); A("v_add_u32 v4, s48, v4"); A(f"v_lshl_add_u32 v{90+i}, v4, 10, v11")
        A("s_waitcnt lgkmcnt(0)", **R)
        A(f"s_mov_b32 s48, {WDF}")
        for i in range(5):
            r = 64 + 4 * i
            A(f"buffer_store_dwordx4 v[{r}:{r+3}], v{90+i}, {ws}, s48 offen{SC1}", **R)
        A.label(done)

    STG = 36864
    def A1_setup(self, x_off):
        A = self.A; wave = sWAVE
        self.tile_roles()
        A(f"s_cmp_lt_u32 {wave}, 2")
        A(f"s_cselect_b32 s36, s12, s16"); A(f"s_cselect_b32 s37, s13, s17"); A(f"s_mov_b32 s38, {D*D*2}"); A("s_mov_b32 s39, 0x20000")
        A("v_lshrrev_b32 v14, 4, v0"); A("v_and_b32 v15, 15, v0")
        for i in range(4):
            A(f"v_add_u32 v3, {4*i}, v14"); A("v_xor_b32 v3, v15, v3")
            A(f"v_mul_u32_u24 v4, 163840, v14"); A(f"v_lshl_add_u32 v{16+i}, v3, 4, v4")
        A(f"s_lshl_b32 s28, {wave}, 2"); A("v_add_u32 v3, s28, v14"); A("v_xor_b32 v3, v15, v3")
        A("v_mul_u32_u24 v4, 1280, v14"); A(f"v_lshl_add_u32 v20, v3, 4, v4")
        A(f"s_or_b32 s29, s24, {wave}"); A("s_cmp_eq_u32 s29, 0"); A(f"s_cselect_b32 s29, {320*1280}, 0")
        A("v_cmp_eq_u32 vcc, 0, v14"); A(f"v_mov_b32 v5, s29"); A(f"v_cndmask_b32 v5, 0, v5, vcc"); A(f"v_add_u32 v21, v20, v5")
        A(f"s_lshl_b32 s29, s23, 2"); A(f"s_add_u32 s29, s29, {wave}"); A("s_lshl_b32 s29, s29, 4"); A("s_add_u32 s29, s29, s22"); A("s_mul_i32 s29, s29, 1280")
        if x_off: A(f"s_add_u32 s29, s29, {x_off}")
        A(f"s_mul_i32 s30, s24, 40"); A(f"s_and_b32 s31, {wave}, 1"); A("s_lshl_b32 s31, s31, 2"); A("s_add_u32 s30, s30, s31"); A("s_mul_i32 s30, s30, 1280")
        A(f"s_lshl_b32 s31, {wave}, 12"); A(f"s_lshl_b32 s32, {wave}, 10"); A("s_add_u32 s32, s32, 16384")
        for qq in range(4):
            A(f"v_add_u32 v3, {4*qq}, v14"); A("v_xor_b32 v3, v15, v3"); A("v_lshlrev_b32 v3, 4, v3"); A("v_lshl_add_u32 v3, v15, 8, v3")
            A(f"v_add_u32 v{24+qq}, s31, v3"); A(f"v_add_u32 v{28+qq}, {2*self.STG}, v{24+qq}")
            A(f"v_add_u32 v{32+qq}, 16384, v3"); A(f"v_add_u32 v{36+qq}, {2*self.STG}, v{32+qq}")
    def A1_dma_x(self, s, x_srd, aux):
        slot = (s % 4) * self.STG
        return [[f"s_add_u32 m0, s31, {slot + i*1024}", f"s_add_u32 s33, s29, {i*4*163840 + s*256}",
                 (f"buffer_load_dwordx4 v{16+i}, {x_srd}, s33 offen{aux} lds", f"a1s{s}")] for i in range(4)]
    def A1_dma_w(self, s):
        slot = (s % 4) * self.STG
        return [[f"s_add_u32 m0, s32, {slot + ct*4096}", f"s_add_u32 s33, s30, {ct*8*1280 + s*256}",
                 (f"buffer_load_dwordx4 v{21 if ct == 0 else 20}, s[36:39], s33 offen lds", f"a1s{s}")] for ct in range(5)]
    def emit(self, x):
        if isinstance(x, tuple): self.A(x[0], tag=x[1])
        else: self.A(x)
    def emitl(self, L):
        for d in L:
            for x in d: self.emit(x)
    def dft16_consts(self):
        A = self.A; t = 48
        A(f"v_and_b32 v{t}, 15, v0"); A(f"v_lshrrev_b32 v{t+1}, 4, v0"); A(f"v_lshlrev_b32 v{t+1}, 2, v{t+1}")
        for j in range(4):
            A(f"v_add_u32 v{t+2}, {j}, v{t+1}"); A(f"v_mul_u32_u24 v{t+2}, v{t}, v{t+2}"); A(f"v_and_b32 v{t+2}, 15, v{t+2}")
            A(f"v_cvt_f32_u32 v{t+2}, v{t+2}"); A(f"v_mul_f32 v{t+2}, {f2u(1/16):#x}, v{t+2}")
            A(f"v_cos_f32 v{t+3+j}, v{t+2}"); A(f"v_sin_f32 v{t+7+j}, v{t+2}")
        for p in range(2):
            A(f"v_cvt_pk_bf16_f32 v{vC16+p}, v{t+3+2*p}, v{t+4+2*p}"); A(f"v_cvt_pk_bf16_f32 v{vS16+p}, v{t+7+2*p}, v{t+8+2*p}")
    def A1_main(self, issued, x_srd, aux, Z):
        A = self.A; wave = sWAVE; ws = SRD_WS
        ACC = 64; FA = 96; FB = 112; vSum, vSq = 44, 45
        A(f"v_mov_b32 v{vSum}, 0"); A(f"v_mov_b32 v{vSq}, 0"); A("s_mov_b32 s34, 0x3f803f80")
        def reads(k):
            s, qq = divmod(k, 4); slot = s % 4; hi = 4 if slot >= 2 else 0; off = (slot % 2) * self.STG
            fa = FA + 4 * (k % 2); fb = FB + 20 * (k % 2)
            L = [f"ds_read_b128 v[{fa}:{fa+3}], v{24+hi+qq} offset:{off}"]
            for ct in range(5): L.append(f"ds_read_b128 v[{fb+4*ct}:{fb+4*ct+3}], v{32+hi+qq} offset:{off+ct*4096}")
            return L
        dq = []
        issued = set(issued)
        def enter(s):
            assert s in issued
            A.wait_vm(f"a1s{s}"); A("s_barrier")
            for nx in range(5):
                if nx not in issued and nx <= s + 3:
                    dq.extend(self.A1_dma_x(nx, x_srd, aux)); dq.extend(self.A1_dma_w(nx)); issued.add(nx)
        enter(0)
        for x in reads(0): A(x)
        for k in range(20):
            nk = k + 1
            if nk < 20:
                if nk % 4 == 0:
                    while dq: self.emitl([dq.pop(0)])
                    A.wait_ds(); enter(nk // 4)
                rl = reads(nk)
            else: rl = []
            fa = FA + 4 * (k % 2); fb = FB + 20 * (k % 2)
            for ct in range(5):
                a = ACC + 4 * ct; c = "0" if k == 0 else f"v[{a}:{a+3}]"
                A(f"v_mfma_f32_16x16x32_bf16 v[{a}:{a+3}], v[{fa}:{fa+3}], v[{fb+4*ct}:{fb+4*ct+3}], {c}")
                if rl: A(rl.pop(0))
                if ct < 4:
                    A(f"v_dot2c_f32_bf16 v{vSq}, v{fa+ct}, v{fa+ct}"); A(f"v_dot2c_f32_bf16 v{vSum}, s34, v{fa+ct}")
                if dq: self.emitl([dq.pop(0)])
            while rl: A(rl.pop(0))
        self.stamp('a1_loop')
        for v in (vSum, vSq):
            A(f"v_mov_b32 v3, v{v}"); A(f"v_permlane16_swap_b32 v{v}, v3"); A(f"v_add_f32 v{v}, v{v}, v3")
            A(f"v_mov_b32 v3, v{v}"); A(f"v_permlane32_swap_b32 v{v}, v3"); A(f"v_add_f32 v{v}, v{v}, v3")
        A(f"v_mul_f32 v{vSum}, {f2u(1/640):#x}, v{vSum}"); A(f"v_mul_f32 v{vSq}, {f2u(1/640):#x}, v{vSq}")
        A(f"v_fma_f32 v{vSq}, -v{vSum}, v{vSum}, v{vSq}"); A(f"v_add_f32 v{vSq}, {f2u(1e-5):#x}, v{vSq}")
        A(f"v_rsq_f32 v{vSq}, v{vSq}")
        A("v_lshlrev_b32 v3, 4, v14")
        for r in range(4):
            A(f"v_add_u32 v4, {4*r}, v3"); A(f"ds_bpermute_b32 v{48+r}, v4, v{vSq}")
        PP = 160; PQ = 180; ZV = 200
        for ct in range(5):
            a = ACC + 4 * ct
            for r in range(4): A(f"v_mul_f32 v{a+r}, v{a+r}, v{48+r}")
        for ct in range(5):
            a = ACC + 4 * ct; b = FB + 2 * ct
            A(f"v_cvt_pk_bf16_f32 v{b}, v{a}, v{a+1}"); A(f"v_cvt_pk_bf16_f32 v{b+1}, v{a+2}, v{a+3}")
        for ct in range(5):
            b = FB + 2 * ct
            A(f"v_mfma_f32_16x16x16_bf16 v[{PP+4*ct}:{PP+4*ct+3}], v[{vC16}:{vC16+1}], v[{b}:{b+1}], 0")
            A(f"v_mfma_f32_16x16x16_bf16 v[{PQ+4*ct}:{PQ+4*ct+3}], v[{vS16}:{vS16+1}], v[{b}:{b+1}], 0")
        A("v_mov_b32 v5, 1.0"); A("v_mov_b32 v6, -1.0"); A("v_cmp_gt_u32 vcc, 8, v15"); A("v_cndmask_b32 v5, v6, v5, vcc")
        A("s_barrier")
        for ct in range(5):
            for r in range(4):
                A(f"v_fmac_f32_dpp v{PP+4*ct+r}, v{PQ+4*ct+r}, v5 row_ror:8 row_mask:0xf bank_mask:0xf")
        A("v_and_b32 v3, 7, v15"); A("v_lshrrev_b32 v4, 3, v15")
        A("v_lshlrev_b32 v3, 4, v3"); A("v_lshl_add_u32 v3, v4, 3, v3")
        A("v_mul_u32_u24 v4, 2560, v14"); A("v_add_u32 v3, v3, v4")
        A(f"s_lshl_b32 s33, {wave}, 1"); A("v_add_u32 v3, s33, v3")
        for ct in range(5):
            for p in range(2):
                z = ZV + 2 * ct + p
                A(f"v_cvt_pk_bf16_f32 v{z}, v{PP+4*ct+2*p}, v{PP+4*ct+2*p+1}")
                A(f"ds_write_b16 v3, v{z} offset:{(2*p)*640 + ct*128}")
                A(f"ds_write_b16_d16_hi v3, v{z} offset:{(2*p+1)*640 + ct*128}")
        A(f"s_lshl_b32 s33, {wave}, 6"); A("v_add_u32 v7, s33, v0")
        A("s_lshl_b32 s33, s22, 1"); A("s_add_u32 s33, s33, s23"); A("s_mul_i32 s33, s33, 320"); A("s_mul_i32 s35, s24, 40"); A("s_add_u32 s33, s33, s35")
        A("s_lshl_b32 s33, s33, 4"); A(f"s_add_u32 s33, s33, {Z}")
        for u in range(3):
            A(f"v_add_u32 v8, {256*u}, v7")
            v_udiv(A, 'v9', 'v8', 40, 768)
            A("v_mul_u32_u24 v10, 40, v9"); A("v_sub_u32 v10, v8, v10")
            A(f"v_mul_u32_u24 v9, {32*5120}, v9"); A(f"v_lshl_add_u32 v{12+u if u < 2 else 11}, v10, 4, v9")
            A(f"v_lshlrev_b32 v{52+u}, 4, v8")
        A.drain(vm=False); A("s_barrier")
        for u in range(3): A(f"ds_read_b128 v[{ZV+12+4*u}:{ZV+15+4*u}], v{52+u}")
        for u in range(2):
            A(f"buffer_store_dwordx4 v[{ZV+12+4*u}:{ZV+15+4*u}], v{12+u}, {ws}, s33 offen{SC1}", tag='z')
        l = self.lab('zs')
        A.drain(vm=False)
        A(f"s_cmp_ge_u32 {wave}, 2"); A(f"s_cbranch_scc1 {l}")
        A(f"buffer_store_dwordx4 v[{ZV+20}:{ZV+23}], v11, {ws}, s33 offen{SC1}", raw=True)
        A.label(l)

    def A2_consts(self):
        A = self.A; wave = sWAVE; t = 48; vB = 96
        self.tile_roles()
        A(f"v_and_b32 v{t}, 15, v0"); A(f"v_lshrrev_b32 v{t+1}, 4, v0")
        A(f"s_lshl_b32 s28, s23, 2"); A(f"s_add_u32 s28, s28, {wave}"); A("s_lshl_b32 s28, s28, 4"); A("s_add_u32 s28, s28, s22")
        A(f"v_lshl_add_u32 v{t}, v{t}, 7, s28")
        A(f"v_lshrrev_b32 v{t+2}, 1, v{t+1}"); A(f"v_and_b32 v{t+1}, 1, v{t+1}"); A(f"v_lshl_add_u32 v{t+1}, v{t+1}, 6, v{t+2}")
        A(f"v_mul_u32_u24 v{t+1}, v{t}, v{t+1}")
        A(f"s_cmp_lt_u32 s24, 4"); A(f"s_mov_b32 s29, {f2u(1/2048):#x}"); A(f"s_cselect_b32 s29, s29, {f2u(-1/2048):#x}")
        for q in range(8):
            for i in range(4):
                k = 2 * q + 16 * i
                A(f"v_mad_u32_u24 v{t+2+i}, v{t}, {k}, v{t+1}")
                A(f"v_and_b32 v{t+2+i}, 0x7ff, v{t+2+i}")
                A(f"v_cvt_f32_u32 v{t+2+i}, v{t+2+i}")
                A(f"v_mul_f32 v{t+2+i}, s29, v{t+2+i}")
            for i in range(4): A(f"v_cos_f32 v{t+6+i}, v{t+2+i}")
            for i in range(4): A(f"v_sin_f32 v{t+2+i}, v{t+2+i}")
            b = vB + 4 * q
            A(f"v_cvt_pk_bf16_f32 v{b}, v{t+6}, v{t+7}"); A(f"v_cvt_pk_bf16_f32 v{b+1}, v{t+8}, v{t+9}")
            A(f"v_cvt_pk_bf16_f32 v{b+2}, v{t+2}, v{t+3}"); A(f"v_cvt_pk_bf16_f32 v{b+3}, v{t+4}, v{t+5}")
    def A2_setup(self):
        A = self.A; wave = sWAVE
        self.tile_roles()
        A("v_and_b32 v1, 15, v0"); A("v_lshrrev_b32 v2, 4, v0"); A(f"v_lshlrev_b32 v12, 4, v0")
        A("s_sub_u32 s28, 16, s22"); A("s_and_b32 s28, s28, 15")
        A("s_cmp_lt_u32 s24, 4"); A("s_cselect_b32 s28, s22, s28")
        A("s_mul_i32 s29, s24, 80"); A("s_sub_u32 s30, 640, s29"); A("s_cmp_lt_u32 s24, 4"); A("s_cselect_b32 s29, s29, s30")
        A("s_cselect_b32 s32, 16, -16"); A("s_lshl_b32 s31, s32, 4")
        A("v_mul_lo_u32 v3, s32, v1"); A(f"v_mul_u32_u24 v4, 5120, v2"); A(f"v_add_u32 v3, v3, v4")
        A("s_lshl_b32 s33, s29, 4"); A(f"v_add_u32 v10, s33, v3")
        A("s_cmp_eq_u32 s24, 4"); A("s_cselect_b32 s33, 5120, 0")
        A("v_cmp_eq_u32 vcc, 0, v1"); A("v_mov_b32 v5, s33"); A("v_cndmask_b32 v5, 0, v5, vcc"); A(f"v_sub_u32 v11, v10, v5")
        A(f"s_mul_i32 s34, s28, {32*5120}"); A(f"s_mul_i32 s35, {wave}, {2*4*5120}"); A("s_add_u32 s34, s34, s35")
        A(f"s_mul_i32 s35, {wave}, 10240")
        A(f"s_lshl_b32 s38, s23, 2"); A(f"s_add_u32 s38, s38, {wave}")
    def A2_main(self, Z, XF, ST):
        A = self.A; wave = sWAVE; ws = SRD_WS
        vB = 96; ACC = 64; FA = 128
        A(f"s_add_u32 s34, s34, {Z}")
        for qq in range(2):
            for ct in range(5):
                A(f"s_mul_i32 s36, s31, {ct}"); A("s_add_u32 s36, s36, s34")
                if qq: A(f"s_add_u32 s36, s36, {4*5120}")
                A(f"s_add_u32 m0, s35, {(qq*5+ct)*1024}")
                A(f"buffer_load_dwordx4 v{11 if ct == 0 else 10}, {ws}, s36 offen{SC1} lds", tag='z2')
        A.wait_vm('z2'); A("s_barrier")
        self.stamp('a2_z')
        def reads(q):
            return [f"ds_read_b128 v[{FA+20*(q%2)+4*ct}:{FA+20*(q%2)+4*ct+3}], v12 offset:{(q*5+ct)*1024}" for ct in range(5)]
        for x in reads(0): A(x)
        for q in range(8):
            rl = reads(q + 1) if q < 7 else []
            for ct in range(5):
                a = ACC + 4 * ct; c = "0" if q == 0 else f"v[{a}:{a+3}]"; f = FA + 20 * (q % 2) + 4 * ct
                A(f"v_mfma_f32_16x16x32_bf16 v[{a}:{a+3}], v[{f}:{f+3}], v[{vB+4*q}:{vB+4*q+3}], {c}")
                if rl: A(rl.pop(0))
        A("s_cmp_eq_u32 s24, 0"); A("s_cselect_b32 s40, 0, 1")
        A("v_lshrrev_b32 v3, 1, v2"); A("v_and_b32 v4, 1, v2"); A("v_lshlrev_b32 v5, 4, v1"); A("v_lshl_add_u32 v5, v3, 8, v5"); A("v_lshl_add_u32 v13, v4, 3, v5")
        A("s_mul_i32 s36, s22, 163840"); A("s_mul_i32 s37, s38, 20480"); A("s_add_u32 s36, s36, s37"); A("s_mul_i32 s37, s24, 2560"); A("s_add_u32 s36, s36, s37"); A(f"s_add_u32 s36, s36, {XF}")
        A("v_mov_b32 v6, 0"); A("v_or_b32 v5, s40, v2"); A("v_cmp_eq_u32 vcc, 0, v5"); A(f"v_cndmask_b32 v{ACC}, v{ACC}, v6, vcc")
        A("v_mov_b32 v16, 0"); A("v_mov_b32 v17, 0")
        for ct in range(5):
            a = ACC + 4 * ct
            for p in range(2):
                rr = RES + 2 * ct + p
                A(f"v_lshlrev_b32 v14, 16, v{rr}"); A(f"v_and_b32 v15, 0xffff0000, v{rr}")
                A(f"v_add_f32 v{a+2*p}, v{a+2*p}, v14"); A(f"v_add_f32 v{a+2*p+1}, v{a+2*p+1}, v15")
                A(f"v_cvt_pk_bf16_f32 v{rr}, v{a+2*p}, v{a+2*p+1}")
            A(f"buffer_store_dwordx2 v[{RES+2*ct}:{RES+2*ct+1}], v13, {ws}, s36 offen offset:{ct*512}{SC1}", tag='xf')
        for ct in range(5):
            a = ACC + 4 * ct
            for r in range(4):
                A(f"v_add_f32 v16, v16, v{a+r}"); A(f"v_fmac_f32 v17, v{a+r}, v{a+r}")
        for v in (16, 17):
            A(f"v_mov_b32 v3, v{v}"); A(f"v_permlane16_swap_b32 v{v}, v3"); A(f"v_add_f32 v{v}, v{v}, v3")
            A(f"v_mov_b32 v3, v{v}"); A(f"v_permlane32_swap_b32 v{v}, v3"); A(f"v_add_f32 v{v}, v{v}, v3")
        A("s_lshl_b32 s36, s22, 13"); A("s_lshr_b32 s37, s24, 1"); A("s_lshl_b32 s37, s37, 11"); A("s_add_u32 s36, s36, s37")
        A("s_lshl_b32 s37, s38, 8"); A("s_add_u32 s36, s36, s37"); A("s_and_b32 s37, s24, 1"); A("s_lshl_b32 s37, s37, 3"); A("s_add_u32 s36, s36, s37"); A(f"s_add_u32 s36, s36, {ST}")
        A("v_lshlrev_b32 v5, 4, v1")
        A(f"buffer_store_dwordx2 v[16:17], v5, {ws}, s36 offen{SC1}", tag='st')

    def B1_pre(self, XF, ST, HH):
        A = self.A; wave = sWAVE; ws = SRD_WS; o = self.o
        R = o['b1_R']; CSL = R * 16384; self.CSL = CSL
        vX, vW, vHH, vCS = 10, 11, 12, 13
        A(f"s_mov_b32 s22, {sC1}"); A(f"s_mov_b32 s23, {sI1}"); A(f"s_mov_b32 s24, {sT0}")
        A("v_and_b32 v1, 31, v0"); A("v_lshrrev_b32 v2, 5, v0"); A("v_lshrrev_b32 v3, 4, v1"); A("v_and_b32 v4, 15, v0")
        A("v_lshlrev_b32 v5, 4, v4"); A(f"v_lshl_add_u32 v5, v2, 8, v5")
        A(f"v_mul_u32_u24 v6, 20480, v3"); A(f"v_add_u32 v{vX}, v6, v5")
        A(f"v_lshl_add_u32 v{vHH}, v3, 10, v5"); A(f"v_lshlrev_b32 v{vW}, 4, v0")
        A(f"v_lshlrev_b32 v{vCS}, 4, v2"); A(f"v_add_u32 v{vCS}, {CSL}, v{vCS}"); A(f"v_add_u32 v14, 0x10000, v{vW}")
        A(f"s_mul_i32 s28, s22, 163840"); A(f"s_mul_i32 s29, {wave}, 40960"); A("s_add_u32 s28, s28, s29"); A(f"s_add_u32 s28, s28, {XF}")
        A(f"s_mul_i32 s30, s24, 40960"); A(f"s_lshl_b32 s29, {wave}, 10"); A("s_add_u32 s30, s30, s29"); A(f"s_add_u32 s30, s30, {W1F}")
        A(f"s_mul_i32 s31, s22, 442368"); A(f"s_lshr_b32 s29, {wave}, 1"); A("s_mul_i32 s29, s29, 221184"); A("s_add_u32 s31, s31, s29")
        A(f"s_and_b32 s29, {wave}, 1"); A("s_lshl_b32 s29, s29, 11"); A("s_add_u32 s31, s31, s29"); A(f"s_add_u32 s31, s31, {HH}")
        for P in (1, 2, 3, 4): A(f"s_mul_i32 s{32+P}, {wave}, {P*1024}")
        A(f"v_lshlrev_b32 v7, 4, v1"); A(f"v_lshl_add_u32 v7, v2, 12, v7")
        A(f"s_lshl_b32 s42, s22, 13"); A(f"s_lshl_b32 s37, {wave}, 9"); A("s_add_u32 s42, s42, s37"); A(f"s_add_u32 s42, s42, {ST}")
        A(f"s_lshl_b32 s37, {wave}, 8"); A("v_lshlrev_b32 v8, 2, v0"); A("v_add_u32 v8, s37, v8")
        A(f"s_lshl_b32 s29, s24, 7"); A(f"s_add_u32 s29, s29, {CSP}")
        for k in range(5):
            A(f"buffer_load_dword v{20+k}, v8, {ws}, s29 offen{SC1}", tag='csp')
            if k < 4: A(f"s_add_u32 s29, s29, {108*128}")
        stages = []
        for pi, tiles in enumerate(o['b1_passes']):
            P = len(tiles); KS = 4 if P >= 3 else 8
            for q0 in range(0, 40, KS): stages.append(dict(P=P, tiles=tiles, q0=q0, KS=KS, pi=pi))
        self.b1_stages = stages; self.b1_wdone = set(); self.b1_wcnt = {}
        npre = min(o['b1_pre'], R - 2)
        for s in range(npre): self.b1_emitl(self.b1_dma_stage(s))
        A("v_add_f32 v20, v20, v21"); A("v_add_f32 v22, v22, v23"); A("v_add_f32 v20, v20, v24"); A("v_add_f32 v20, v20, v22")
        A(f"v_add_u32 v8, {CSL}, v8"); A("ds_write_b32 v8, v20")
        self.b1_npre = npre
    def b1_dma_stage(self, s):
        st = self.b1_stages[s]; out = []; slot = (s % self.o['b1_R']) * 16384
        for rep in range(st['KS'] // 4):
            for ti, t in enumerate(st['tiles']):
                ldsoff = slot + (rep * 4 * st['P'] + ti) * 1024
                goff = (t * 40 + st['q0'] + 4 * rep) * 1024
                out.append([f"s_add_u32 m0, s{32+st['P']}, {ldsoff}", f"s_add_u32 s38, s30, {goff}",
                            (f"buffer_load_dwordx4 v11, {SRD_WS}, s38 offen{SC1} lds", f"w{s}")])
        return out
    def b1_emit(self, x):
        self.emit(x)
        if isinstance(x, tuple):
            if x[1].startswith('x'): self.b1_xdone.add(int(x[1][1:]))
            if x[1].startswith('w'):
                self.b1_wcnt[x[1]] = self.b1_wcnt.get(x[1], 0) + 1
                si = int(x[1][1:]); st = self.b1_stages[si]
                if self.b1_wcnt[x[1]] == st['P'] * st['KS'] // 4: self.b1_wdone.add(si)
    def b1_emitl(self, L):
        for d in L:
            for x in d: self.b1_emit(x)
    def B1_main(self, extra_fill=None):
        A = self.A; ws = SRD_WS; o = self.o
        R = o['b1_R']; RA = o['b1_RA']; CSL = self.CSL; stages = self.b1_stages; NSTG = len(stages)
        WB = 32; NB = RA + 1; ACC = [64, 128]; vNm, vStd, vR1 = 56, 57, 58
        vX, vW, vHH, vCS = 10, 11, 12, 13; CSR = 200; OUT = [216, 220]
        self.b1_xdone = set()
        def xload(q):
            return [f"s_add_u32 s39, s28, {(q // 8) * 4096}",
                    (f"buffer_load_dwordx4 a[{4*q}:{4*q+3}], v{vX}, {ws}, s39 offen offset:{(q % 8) * 512}{SC1}", f"x{q}")]
        A(f"buffer_load_dwordx4 v[16:19], v7, {ws}, s42 offen{SC1}", tag='st')
        A(f"buffer_load_dwordx4 v[20:23], v7, {ws}, s42 offen offset:2048{SC1}", tag='st')
        xq = 0
        nx0 = o.get('b1_xpre', 12)
        while xq < nx0:
            for x in xload(xq): self.b1_emit(x)
            xq += 1
        for s in range(self.b1_npre, min(R - 2, NSTG)): self.b1_emitl(self.b1_dma_stage(s))
        A("v_add_f32 v16, v16, v18"); A("v_add_f32 v17, v17, v19"); A("v_add_f32 v20, v20, v22"); A("v_add_f32 v21, v21, v23")
        A("v_add_f32 v16, v16, v20"); A("v_add_f32 v17, v17, v21")
        A("v_mov_b32 v18, v16"); A("v_mov_b32 v19, v17")
        A("v_permlane32_swap_b32 v16, v18"); A("v_permlane32_swap_b32 v17, v19")
        A("v_add_f32 v16, v16, v18"); A("v_add_f32 v17, v17, v19")
        A(f"v_mul_f32 v16, {f2u(1.0/640):#x}, v16"); A(f"v_mul_f32 v17, {f2u(1.0/640):#x}, v17")
        A(f"v_fma_f32 v17, -v16, v16, v17"); A(f"v_add_f32 v17, {f2u(1e-5):#x}, v17")
        A(f"v_sqrt_f32 v{vStd}, v17"); A(f"v_sub_f32 v{vNm}, 0, v16"); A(f"v_rcp_f32 v{vR1}, v{vStd}"); A(f"v_mul_f32 v{vR1}, {f2u(-LOG2E):#x}, v{vR1}")
        frags = []
        for s, st in enumerate(stages):
            slot = (s % R) * 16384
            for qq in range(st['KS']):
                for ti, t in enumerate(st['tiles']):
                    frags.append((s, slot + (qq * st['P'] + ti) * 1024, t, st['q0'] + qq))
        NF = len(frags)
        dmaq = []; fillq = []
        def acc(pi, ti): return ACC[pi % 2] + 16 * ti
        def epilogue(pi, ti, t, idx):
            a = acc(pi, ti); L = []
            for i in range(4): L.append(f"ds_read_b128 v[{CSR+4*i}:{CSR+4*i+3}], v{vCS} offset:{t*128 + i*32}")
            for r in range(8): L.append(f"v_fma_f32 v{a+r}, v{vNm}, v{CSR+r}, v{a+r}")
            for r in range(8): L.append(f"v_mul_f32 v{a+r}, v{vR1}, v{a+r}")
            for r in range(8): L.append(f"v_exp_f32 v{a+r}, v{a+r}")
            for r in range(8): L.append(f"v_fma_f32 v{a+8+r}, v{vNm}, v{CSR+8+r}, v{a+8+r}")
            for r in range(8): L.append(f"v_fma_f32 v{a+r}, v{a+r}, v{vStd}, v{vStd}")
            for r in range(8): L.append(f"v_rcp_f32 v{a+r}, v{a+r}")
            L.append(f"s_add_u32 s40, s24, {t}"); L.append("s_lshr_b32 s41, s40, 1"); L.append("s_lshl_b32 s41, s41, 12")
            L.append("s_and_b32 s40, s40, 1"); L.append("s_lshl_b32 s40, s40, 9"); L.append("s_add_u32 s40, s40, s41"); L.append("s_add_u32 s40, s40, s31")
            for r in range(8): L.append(f"v_mul_f32 v{a+8+r}, v{a+8+r}, v{a+r}")
            ot = OUT[idx % 2]
            for r in range(4): L.append(f"v_cvt_pk_bf16_f32 v{ot+r}, v{a+8+2*r}, v{a+8+2*r+1}")
            L.append((f"buffer_store_dwordx4 v[{ot}:{ot+3}], v{vHH}, {ws}, s40 offen{SC1}", 'hh'))
            return L
        def cost(x):
            t = x[0] if isinstance(x, tuple) else x
            return 8 if t.split()[0] in TRANS else 4
        def read_frag(f):
            s, addr, t, q = frags[f]; b = WB + 4 * (f % NB)
            if addr < 65536: A(f"ds_read_b128 v[{b}:{b+3}], v{vW} offset:{addr}", tag='wf')
            else: A(f"ds_read_b128 v[{b}:{b+3}], v14 offset:{addr-65536}", tag='wf')
        state = dict(cur=-1, xq=xq)
        def enter_stage(s):
            assert s in self.b1_wdone, s
            A.wait_vm([f"w{s}"])
            if s == 0: A.wait_ds()
            A("s_barrier")
            if s == 0: self.stamp('b1_first')
            nxt = s + R - 2
            if nxt < NSTG: dmaq.extend(self.b1_dma_stage(nxt))
            for _ in range(o.get('b1_xrate', 4)):
                if state['xq'] < 40:
                    dmaq.append(xload(state['xq'])); state['xq'] += 1
        def pre_read(f):
            if f >= NF: return
            if frags[f][0] != state['cur']:
                state['cur'] = frags[f][0]; enter_stage(state['cur'])
            read_frag(f)
        for f in range(min(RA, NF)): pre_read(f)
        tidx = 0
        for f in range(NF):
            s, addr, t, q = frags[f]
            st = stages[s]; pi = st['pi']; ti = st['tiles'].index(t)
            a = acc(pi, ti); b = WB + 4 * (f % NB)
            c = "0" if q == 0 else f"v[{a}:{a+15}]"
            assert q in self.b1_xdone, q
            A(f"v_mfma_f32_32x32x16_bf16 v[{a}:{a+15}], v[{b}:{b+3}], a[{4*q}:{4*q+3}], {c}")
            pre_read(f + RA)
            budget = o.get('b1_budget', 16)
            if dmaq:
                self.b1_emitl([dmaq.pop(0)]); budget -= 8
            while fillq and budget > 0:
                x = fillq.pop(0); self.b1_emit(x); budget -= cost(x)
            last_of_pass = (f + 1 == NF) or (stages[frags[f+1][0]]['pi'] != pi)
            if last_of_pass:
                while fillq: self.b1_emit(fillq.pop(0))
                self.stamp(f'b1_pass{pi}')
                for ti2, t2 in enumerate(st['tiles']):
                    fillq += epilogue(pi, ti2, t2, tidx); tidx += 1
        while dmaq: self.b1_emitl([dmaq.pop(0)])
        while fillq: self.b1_emit(fillq.pop(0))

    def B2_pre(self, HH):
        A = self.A; wave = sWAVE; ws = SRD_WS; o = self.o
        self.tile_roles()
        A(f"v_lshlrev_b32 v10, 4, v0"); A("v_and_b32 v1, 15, v0"); A("v_lshrrev_b32 v2, 4, v0")
        A("v_mul_u32_u24 v5, 163840, v1"); A(f"v_lshl_add_u32 v12, v2, 3, v5")
        A(f"s_mul_i32 s28, {wave}, 14"); A(f"s_mul_i32 s29, {wave}, 13"); A("s_add_u32 s29, s29, 2")
        A(f"s_cmp_lt_u32 {wave}, 2"); A("s_cselect_b32 s28, s28, s29")
        A("s_mul_i32 s29, s24, 54"); A("s_add_u32 s29, s29, s28"); A("s_mul_i32 s29, s29, 5120"); A(f"s_add_u32 s29, s29, {WDF}")
        A("s_lshl_b32 s30, s22, 1"); A("s_add_u32 s30, s30, s23"); A("s_mul_i32 s30, s30, 221184"); A("s_lshl_b32 s31, s28, 12"); A("s_add_u32 s30, s30, s31"); A(f"s_add_u32 s30, s30, {HH}")
        for u in range(4):
            A(f"s_add_u32 s31, {wave}, {u}"); A("s_and_b32 s31, s31, 3"); A("s_lshl_b32 s31, s31, 10"); A(f"s_add_u32 s{32+u}, s30, s31")
        A("s_lshl_b32 s43, s23, 2"); A(f"s_add_u32 s43, s43, {wave}")
        self.b2_NW = o.get('b2_nw', 9); self.b2_NH = o.get('b2_nh', 4)
        self.b2_wiss = 0
        for ks in range(min(o.get('b2_wpre', 6), self.b2_NW, 14)):
            self.emitl(self.b2_wloads(ks)); self.b2_wiss = ks + 1
    def b2_wbuf(self, ks, ct): return (ks % self.b2_NW) * 20 + 4 * ct
    def b2_hbuf(self, ks, u): return self.b2_NW * 20 + (ks % self.b2_NH) * 16 + 4 * u
    def b2_wloads(self, ks):
        L = []
        for ct in range(5):
            b = self.b2_wbuf(ks, ct)
            pre = [f"s_add_u32 s38, s29, {ks*5120}"] if ct == 0 else ([f"s_add_u32 s38, s29, {ks*5120+4096}"] if ct == 4 else [])
            L.append(pre + [f"buffer_load_dwordx4 a[{b}:{b+3}], v10, {SRD_WS}, s38 offen offset:{(ct % 4)*1024}{SC1}"])
        return L
    def b2_hloads(self, ks):
        return [[f"s_add_u32 s40, s{32+u}, {ks*4096}", f"buffer_load_dwordx4 a[{self.b2_hbuf(ks,u)}:{self.b2_hbuf(ks,u)+3}], v10, {SRD_WS}, s40 offen{SC1}"] for u in range(4)]
    def B2_main(self, out_srd, out_off, aux):
        A = self.A; wave = sWAVE; ws = SRD_WS; o = self.o
        ACC = 64; NK = 14; NW, NH = self.b2_NW, self.b2_NH
        assert NW * 20 + NH * 16 <= 256
        hiss = 0; wiss = self.b2_wiss
        for ks in range(NH - 1):
            self.emitl(self.b2_hloads(ks)); hiss = ks + 1
            if wiss <= ks: self.emitl(self.b2_wloads(wiss)); wiss += 1
        skip = self.lab('b2skip')
        q = []
        for ks in range(NK):
            if hiss < NK and hiss < ks + NH: q += self.b2_hloads(hiss); hiss += 1
            while wiss < NK and wiss < ks + NW and wiss <= ks + o.get('b2_wahead', 6): q += self.b2_wloads(wiss); wiss += 1
            assert wiss > ks and hiss > ks
            if ks == NK - 1:
                while q: self.emitl([q.pop(0)])
                A(f"s_cmp_ge_u32 {wave}, 2"); A(f"s_cbranch_scc1 {skip}")
            cnt = 0
            for ct in range(5):
                for u in range(4):
                    a = ACC + (u * 5 + ct) * 4; c = "0" if ks == 0 else f"v[{a}:{a+3}]"
                    wa = self.b2_wbuf(ks, ct); hb = self.b2_hbuf(ks, u)
                    A(f"v_mfma_f32_16x16x32_bf16 v[{a}:{a+3}], a[{wa}:{wa+3}], a[{hb}:{hb+3}], {c}")
                    cnt += 1
                    if q and cnt % 2 == 0: self.emitl([q.pop(0)])
            while q: self.emitl([q.pop(0)])
        A.label(skip)
        A("s_waitcnt vmcnt(0)")
        self.stamp('b2_loop')
        A("s_nop 7")
        for u in range(1, 4):
            A(f"s_add_u32 s31, {wave}, {u}"); A("s_and_b32 s31, s31, 3"); A("s_mul_i32 s31, s31, 15360"); A(f"s_add_u32 s31, s31, {(u-1)*5120}")
            A(f"v_add_u32 v13, s31, v10")
            for ct in range(5):
                a = ACC + (u * 5 + ct) * 4
                A(f"ds_write_b128 v13, v[{a}:{a+3}] offset:{ct*1024}")
        A("s_lshl_b32 s37, s43, 4"); A("s_add_u32 s37, s37, s22"); A("s_mul_i32 s37, s37, 1280"); A("s_mul_i32 s38, s24, 160"); A("s_add_u32 s37, s37, s38")
        if out_off: A(f"s_add_u32 s37, s37, {out_off}")
        A.drain(vm=False); A("s_barrier")
        A(f"s_mul_i32 s31, {wave}, 15360"); A(f"v_add_u32 v13, s31, v10")
        T = 176
        for rk in range(3):
            for ct in range(5):
                A(f"ds_read_b128 v[{T+(rk*5+ct)*4}:{T+(rk*5+ct)*4+3}], v13 offset:{rk*5120+ct*1024}")
        for ct in range(5):
            a = ACC + ct * 4
            for rk in range(3):
                for r in range(4): A(f"v_add_f32 v{a+r}, v{a+r}, v{T+(rk*5+ct)*4+r}")
            for p in range(2):
                rr = RES + 2 * ct + p
                A(f"v_lshlrev_b32 v14, 16, v{rr}"); A(f"v_and_b32 v15, 0xffff0000, v{rr}")
                A(f"v_add_f32 v{a+2*p}, v{a+2*p}, v14"); A(f"v_add_f32 v{a+2*p+1}, v{a+2*p+1}, v15")
                A(f"v_cvt_pk_bf16_f32 v{rr}, v{a+2*p}, v{a+2*p+1}")
            A(f"buffer_store_dwordx2 v[{RES+2*ct}:{RES+2*ct+1}], v12, {out_srd}, s37 offen offset:{ct*32}{aux}", tag='out')

    def build(self):
        A = self.A; wave = sWAVE; ws = SRD_WS
        self.entry()
        self.code_prefetch(self.o.get('code_bytes', 65536))
        A(f"s_lshl_b32 s61, {sWG}, 8"); A(f"s_add_u32 s61, s61, {SYNC}")
        self.one_lane(["v_mov_b32 v254, 0", "v_mov_b32 v255, 0", f"buffer_store_dword v254, v255, {ws}, s61 offen sc1"])
        PB = 3 * self.STG
        self.P_pre(PB)
        self.A1_setup(0)
        n0 = len(A.ins)
        for s in range(3):
            self.emitl(self.A1_dma_x(s, SRD_X, '')); self.emitl(self.A1_dma_w(s))
        A("v_mul_u32_u24 v5, 163840, v15"); A("v_lshl_add_u32 v13, v14, 3, v5")
        A(f"s_lshl_b32 s50, s23, 2"); A(f"s_add_u32 s50, s50, {wave}"); A("s_lshl_b32 s50, s50, 4"); A("s_add_u32 s50, s50, s22"); A("s_mul_i32 s50, s50, 1280"); A("s_mul_i32 s51, s24, 160"); A("s_add_u32 s50, s50, s51")
        for ct in range(5):
            A(f"buffer_load_dwordx2 v[{RES+2*ct}:{RES+2*ct+1}], v13, {SRD_X}, s50 offen offset:{ct*32}", tag='res')
        nyoung = sum(1 for i in A.ins[n0:] if i.kind in VM_KINDS)
        self.dft16_consts()
        self.stamp('p_wait')
        self.P_main(PB, nyoung)
        self.stamp('p_done')
        for layer in range(2):
            Z = (Z1, Z2)[layer]; XF = (X1F, X3F)[layer]; ST = (ST1, ST3)[layer]; HH = (HH1, HH2)[layer]
            if layer == 0: self.A1_main({0, 1, 2}, SRD_X, '', Z)
            else: self.A1_main({0, 1, 2, 3}, ws, SC1, Z)
            self.stamp(f'a1_end{layer}')
            A.drain(); A("s_waitcnt vmcnt(0)"); A("s_barrier")
            if layer == 0:
                csrd, coff, roff, stride = SRD_DBG, 0, 128, 16
            else:
                csrd, coff, roff, stride = ws, line(L_AC), line(L_AR), 256
            A(f"s_mul_i32 s61, {sJ}, {stride}"); A(f"s_add_u32 s62, s61, {roff}")
            if coff: A(f"s_add_u32 s61, s61, {coff}")
            l = self.lab('rel')
            self.one_lane(["v_mov_b32 v254, 1", "v_mov_b32 v255, 0", f"buffer_atomic_add v254, v255, {csrd}, s61 offen sc0 sc1",
                           "s_waitcnt vmcnt(0)", "v_readfirstlane_b32 s63, v254", "s_nop 3", "s_cmp_lg_u32 s63, 31", f"s_cbranch_scc1 {l}",
                           "v_mov_b32 v254, 1", f"buffer_store_dword v254, v255, {csrd}, s62 offen sc1", f"{l}:"])
            self.A2_consts()
            self.A2_setup()
            A(f"s_lshl_b32 s50, {sJ}, 1"); A(f"s_sub_u32 s51, 14, s50")
            A(f"s_cmp_lt_u32 {sJ}, 4"); A("s_cselect_b32 s52, s50, s51")
            A("s_add_u32 s53, s52, 1")
            A("s_add_u32 s54, s52, 2"); A("s_and_b32 s54, s54, 7")
            A(f"s_cmp_lt_u32 {sJ}, 4"); A("s_cselect_b32 s54, s52, s54")
            lane_code = ["v_mov_b32 v255, s52", "v_mov_b32 v254, s53", "v_cmp_eq_u32 vcc, 1, v0", "s_nop 1", "v_cndmask_b32 v255, v255, v254, vcc",
                         "v_mov_b32 v254, s54", "v_cmp_eq_u32 vcc, 2, v0", "s_nop 1", "v_cndmask_b32 v255, v255, v254, vcc", f"v_mul_u32_u24 v255, {stride}, v255"]
            self.wait_ge(csrd, [f"s_mov_b32 s61, {roff}"], 1, lane_code=lane_code)
            self.stamp(f'sA_done{layer}')
            self.A2_main(Z, XF, ST)
            self.stamp(f'a2_end{layer}')
            self.arrive([f"s_lshl_b32 s61, {sC}, 8", f"s_add_u32 s61, s61, {line(L_B(layer))}"])
            self.B1_pre(XF, ST, HH)
            self.wait_ge(ws, [f"s_lshl_b32 s61, {sC1}, 8", f"s_add_u32 s61, s61, {line(L_B(layer))}"], 16)
            self.stamp(f'sB_done{layer}')
            self.B1_main()
            self.stamp(f'b1_end{layer}')
            self.arrive([f"s_lshl_b32 s61, {sC1}, 8", f"s_add_u32 s61, s61, {line(L_C(layer))}"])
            self.B2_pre(HH)
            self.wait_ge(ws, [f"s_lshl_b32 s61, {sC}, 8", f"s_add_u32 s61, s61, {line(L_C(layer))}"], 16)
            self.stamp(f'sC_done{layer}')
            if layer == 0:
                self.B2_main(ws, X2, SC1)
                self.stamp('b2_end0')
                self.arrive([f"s_lshl_b32 s61, {sC}, 1", f"s_add_u32 s61, s61, {sHALF}", "s_lshl_b32 s61, s61, 8", f"s_add_u32 s61, s61, {line(L_D)}"])
                self.A1_setup(X2)
                for s in range(4): self.emitl(self.A1_dma_w(s))
                self.wait_ge(ws, [f"s_lshl_b32 s61, {sC}, 1", f"s_add_u32 s61, s61, {sHALF}", "s_lshl_b32 s61, s61, 8", f"s_add_u32 s61, s61, {line(L_D)}"], 8)
                self.stamp('sD_done')
                for s in range(4): self.emitl(self.A1_dma_x(s, ws, SC1))
            else:
                self.B2_main(SRD_OUT, 0, '')
                self.stamp('b2_end1')
        A.drain()
        A.label("L_exit")
        return A.text()

def header(launches):
    ref = open(f'cdna_kernels/{NAME}.s.ref').read().split('\n')
    hdr = []
    for l in ref:
        if l.startswith('; @launch'): continue
        if not l.startswith(';'): break
        hdr.append(l)
    for l in launches: hdr.append(l)
    return '\n'.join(hdr) + '\n.amdgcn_target "amdgcn-amd-amdhsa--gfx950"\n'
LDS_BYTES = 4 * 36864
def make(out, diag=False, name=NAME + '_kernel', **opt):
    m = Mega(diag=diag, **opt)
    body = m.build()
    txt = kernel_block(name, body, vgpr=512, sgpr=100, accum=256)
    if out:
        open(out, 'w').write(header([f"; @launch grid=(256,1,1) block=(256,1,1) lds={LDS_BYTES}"]) + txt)
    return txt, m
if __name__ == '__main__':
    make(f'cdna_kernels/{NAME}.s')
```

```python
import sys
from mega import *
from build import build_dev
opts = eval(sys.argv[1]) if len(sys.argv) > 1 else {}
txt, m = make(None, diag=True, name='mega_kernel', **opts)
build_dev([('mega_kernel', txt, 512, 100, 256)], 'dev')
open('stampnames.txt','w').write(' '.join(m.names))
print(len(txt), len(m.names))
```

```python
import re

def expand(op):
    op = op.strip()
    neg = op.lstrip('-')
    if neg.startswith('abs(') or neg.startswith('|'):
        neg = neg.replace('abs(', '').replace(')', '').replace('|', '')
    m = re.fullmatch(r'([vas])\[(\d+):(\d+)\]', neg)
    if m:
        return [f"{m.group(1)}{i}" for i in range(int(m.group(2)), int(m.group(3)) + 1)]
    m = re.fullmatch(r'([vas])(\d+)', neg)
    if m:
        return [neg]
    if neg in ('vcc',): return ['vcc_lo', 'vcc_hi']
    if neg in ('vcc_lo', 'vcc_hi', 'm0', 'scc'): return [neg]
    if neg == 'exec': return ['exec']
    return []

TRANS = ('v_exp_f32', 'v_log_f32', 'v_rcp_f32', 'v_rsq_f32', 'v_sqrt_f32', 'v_sin_f32', 'v_cos_f32', 'v_rcp_iflag_f32')
MFMA_PASSES = {'v_mfma_f32_32x32x16_bf16': 8, 'v_mfma_f32_16x16x32_bf16': 4, 'v_mfma_f32_16x16x16_bf16': 4}

class Ins:
    __slots__ = ('text', 'op', 'reads', 'writes', 'kind', 'tag', 'passes', 'srcC', 'srcAB', 'dpp', 'storedata', 'raw', 'wide')
    def __init__(self, text):
        self.text = text; self.reads = set(); self.writes = set(); self.kind = 'other'; self.tag = None
        self.passes = 0; self.srcC = set(); self.srcAB = set(); self.dpp = False; self.storedata = set(); self.raw = False; self.wide = False
        self.op = ''

def split_ops(s):
    out = []; depth = 0; cur = ''
    for ch in s:
        if ch in '[(': depth += 1
        if ch in '])': depth -= 1
        if ch == ',' and depth == 0:
            out.append(cur.strip()); cur = ''
        else:
            cur += ch
    if cur.strip(): out.append(cur.strip())
    return out

def parse(text):
    ins = Ins(text)
    t = text.split(';')[0].strip()
    if not t or t.endswith(':') or t.startswith('.'):
        ins.kind = 'label' if t.endswith(':') else 'directive'
        return ins
    parts = t.split(None, 1)
    op = parts[0]; ins.op = op
    rest = parts[1] if len(parts) > 1 else ''
    ops = split_ops(rest)
    mods = ''
    if ops:
        last = ops[-1].split()
        ops[-1] = last[0]
        mods = ' '.join(last[1:])
    R = ins.reads; W = ins.writes
    def rd(o): R.update(expand(o))
    def wr(o): W.update(expand(o))
    base = re.sub(r'_(e32|e64|dpp|sdwa)$', '', op)
    if op.startswith('v_mfma'):
        ins.kind = 'mfma'; ins.passes = MFMA_PASSES[op]
        wr(ops[0]); rd(ops[1]); rd(ops[2]); rd(ops[3])
        ins.srcAB = set(expand(ops[1]) + expand(ops[2])); ins.srcC = set(expand(ops[3]))
    elif op.startswith('buffer_load'):
        if 'lds' in mods.split():
            ins.kind = 'dma'; rd(ops[0]); rd(ops[1]); rd(ops[2]); R.add('m0')
        else:
            ins.kind = 'vload'; wr(ops[0]); rd(ops[1]); rd(ops[2]); rd(ops[3])
    elif op.startswith('buffer_store'):
        ins.kind = 'vstore'; rd(ops[0]); rd(ops[1]); rd(ops[2]); rd(ops[3])
        ins.storedata = set(expand(ops[0])); ins.wide = op.endswith('x4') or op.endswith('x3')
    elif op.startswith('buffer_atomic'):
        ins.kind = 'vstore'; rd(ops[0]); rd(ops[1]); rd(ops[2]); rd(ops[3])
        if 'sc0' in mods.split():
            ins.kind = 'vload'; wr(ops[0])
    elif op in ('buffer_inv', 'buffer_wbl2'):
        ins.kind = 'vstore'
    elif op.startswith('global_load'):
        ins.kind = 'vload'; wr(ops[0]); rd(ops[1]); rd(ops[2])
    elif op.startswith('global_store'):
        ins.kind = 'vstore'; rd(ops[0]); rd(ops[1]); rd(ops[2]); ins.storedata = set(expand(ops[1])); ins.wide = op.endswith('x4')
    elif op.startswith('ds_read') or op.startswith('ds_bpermute') or op.startswith('ds_swizzle'):
        ins.kind = 'dsread'; wr(ops[0])
        for o in ops[1:]: rd(o)
    elif op.startswith('ds_write') or op.startswith('ds_add'):
        ins.kind = 'dswrite'
        for o in ops: rd(o)
        ins.storedata = set(expand(ops[1]))
    elif op.startswith('s_load') or op in ('s_memtime', 's_memrealtime'):
        ins.kind = 'smem'; wr(ops[0])
        if len(ops) > 1: rd(ops[1])
    elif op == 's_waitcnt': ins.kind = 'wait'
    elif op == 's_nop': ins.kind = 'nop'
    elif op == 's_barrier': ins.kind = 'barrier'
    elif op.startswith('s_cbranch') or op == 's_branch':
        ins.kind = 'branch'
        if 'scc' in op: R.add('scc')
        if 'vcc' in op: R.update(['vcc_lo', 'vcc_hi'])
        if 'exec' in op: R.add('exec')
    elif op in ('s_endpgm', 's_setprio', 's_sleep'): ins.kind = 'salu'
    elif op == 's_setpc_b64':
        ins.kind = 'branch'; rd(ops[0])
    elif op == 's_getpc_b64':
        ins.kind = 'salu'; wr(ops[0])
    elif op.startswith('s_cmp') or op.startswith('s_bitcmp'):
        ins.kind = 'salu'; W.add('scc')
        for o in ops: rd(o)
    elif op.startswith('s_'):
        ins.kind = 'salu'
        wr(ops[0])
        for o in ops[1:]: rd(o)
        if 'saveexec' in op: W.add('exec'); R.add('exec')
        if op in ('s_cselect_b32', 's_cselect_b64', 's_addc_u32', 's_subb_u32'): R.add('scc')
        if op not in ('s_mov_b32', 's_mov_b64', 's_cselect_b32', 's_cselect_b64', 's_mul_i32', 's_mul_hi_u32', 's_getreg_b32', 's_movk_i32'): W.add('scc')
        if op in ('s_addk_i32', 's_mulk_i32'): rd(ops[0])
    elif op.startswith('v_'):
        ins.kind = 'trans' if base in TRANS else 'valu'
        if 'dpp' in op or 'row_' in mods or 'quad_perm' in mods: ins.dpp = True
        if base.startswith('v_cmp'):
            wr(ops[0])
            for o in ops[1:]: rd(o)
            if base.startswith('v_cmpx'): W.add('exec')
        elif base.startswith('v_permlane') and 'swap' in base:
            wr(ops[0]); wr(ops[1]); rd(ops[0]); rd(ops[1]); ins.kind = 'permlane'
        elif base == 'v_writelane_b32':
            wr(ops[0]); rd(ops[0]); rd(ops[1])
        elif base in ('v_readfirstlane_b32', 'v_readlane_b32'):
            ins.kind = 'readlane'; wr(ops[0])
            for o in ops[1:]: rd(o)
        elif base in ('v_add_co_u32', 'v_sub_co_u32', 'v_addc_co_u32'):
            wr(ops[0]); wr(ops[1])
            for o in ops[2:]: rd(o)
        else:
            wr(ops[0])
            for o in ops[1:]: rd(o)
            if base in ('v_fmac_f32', 'v_dot2c_f32_bf16', 'v_mac_f32', 'v_pk_fmac_f16'): rd(ops[0])
            if base == 'v_cndmask_b32' and len(ops) == 3: R.update(['vcc_lo', 'vcc_hi'])
            if ins.dpp: rd(ops[0])
        R.add('exec')
    else:
        raise ValueError('unknown instruction: ' + text)
    return ins

VM_KINDS = ('vload', 'vstore', 'dma')
DS_KINDS = ('dsread', 'dswrite')

class Asm:
    def __init__(self):
        self.ins = []
    def I(self, text, tag=None, raw=False):
        for line in text.split('\n'):
            line = line.strip()
            if not line: continue
            i = parse(line); i.tag = tag; i.raw = raw
            self.ins.append(i)
    __call__ = I
    def label(self, name): self.I(name + ':')
    def wait_vm(self, tags):
        i = Ins(''); i.kind = 'waitvm'; i.tag = set(tags) if not isinstance(tags, str) else {tags}; self.ins.append(i)
    def wait_ds(self, tags=None):
        i = Ins(''); i.kind = 'waitds'; i.tag = None if tags is None else (set(tags) if not isinstance(tags, str) else {tags}); self.ins.append(i)
    def drain(self, vm=True, ds=True):
        i = Ins(''); i.kind = 'drain'; i.tag = (vm, ds); self.ins.append(i)
    def phantom_vm(self, tag, n=1):
        for _ in range(n):
            i = Ins(''); i.kind = 'phantom'; i.tag = tag; self.ins.append(i)
    def comment(self, s):
        i = Ins('; ' + s); i.kind = 'directive'; self.ins.append(i)

    def _waits(self):
        out = []
        vm = []
        ds = []
        def emit_wait(nvm=None, nds=None):
            parts = []
            if nvm is not None: parts.append(f"vmcnt({min(nvm,63)})")
            if nds is not None: parts.append(f"lgkmcnt({min(nds,15)})")
            if parts:
                w = parse('s_waitcnt ' + ' '.join(parts)); out.append(w)
        def need(lst, pred):
            for idx in range(len(lst) - 1, -1, -1):
                if pred(lst[idx]): return len(lst) - 1 - idx
            return None
        for i in self.ins:
            if i.kind == 'phantom':
                vm.append(i)
                if len(vm) > 63: del vm[:len(vm) - 63]
                continue
            if i.kind == 'waitvm':
                n = need(vm, lambda p: p.tag in i.tag)
                if n is not None:
                    emit_wait(nvm=n); del vm[:len(vm) - n]
                continue
            if i.kind == 'waitds':
                n = need(ds, (lambda p: True) if i.tag is None else (lambda p: p.tag in i.tag))
                if n is not None:
                    emit_wait(nds=n); del ds[:len(ds) - n]
                continue
            if i.kind == 'drain':
                a = 0 if (i.tag[0] and vm) else None
                b = 0 if (i.tag[1] and ds) else None
                emit_wait(a, b)
                if i.tag[0]: vm.clear()
                if i.tag[1]: ds.clear()
                continue
            if i.kind in ('label', 'branch') and not i.raw:
                if any(p.writes for p in vm) or any(p.writes for p in ds):
                    pass
            if i.kind == 'wait' and i.raw:
                out.append(i); continue
            if i.kind == 'wait':
                m = re.search(r'vmcnt\((\d+)\)', i.text)
                if m:
                    n = int(m.group(1))
                    if len(vm) > n: del vm[:len(vm) - n]
                m = re.search(r'lgkmcnt\((\d+)\)', i.text)
                if m:
                    n = int(m.group(1))
                    if len(ds) > n: del ds[:len(ds) - n]
                out.append(i); continue
            if not i.raw:
                touch = i.reads | i.writes
                nvm = need(vm, lambda p: bool(p.writes & touch))
                nds = need(ds, lambda p: bool(p.writes & touch))
                if nvm is not None or nds is not None:
                    emit_wait(nvm, nds)
                    if nvm is not None: del vm[:len(vm) - nvm]
                    if nds is not None: del ds[:len(ds) - nds]
            out.append(i)
            if i.kind in VM_KINDS and not i.raw:
                vm.append(i)
                if len(vm) > 63: del vm[:len(vm) - 63]
            if i.kind in DS_KINDS and not i.raw:
                ds.append(i)
                if len(ds) > 15: del ds[:len(ds) - 15]
            if i.kind == 'smem' and not i.raw:
                pass
        return out

    @staticmethod
    def _need_states(p, c):
        n = 0
        valu_like = ('valu', 'trans', 'permlane', 'readlane')
        pv = p.kind in valu_like
        vregs = lambda s: {r for r in s if r[0] in 'va' and r[1:].isdigit()}
        sregs = lambda s: {r for r in s if (r[0] == 's' and r[1:].isdigit()) or r.startswith('vcc')}
        if p.kind == 'mfma':
            D = p.writes
            if c.kind == 'mfma':
                if D & c.srcAB: n = max(n, {4: 8, 8: 12}[p.passes])
                if D & c.srcC:
                    if not (c.srcC == D and c.passes == p.passes): n = max(n, {4: 6, 8: 10}[p.passes])
                if (D & c.writes) and not (c.writes == D and c.srcC == D and c.passes == p.passes):
                    n = max(n, {4: 6, 8: 10}[p.passes])
            elif c.kind in valu_like or c.kind in VM_KINDS or c.kind in DS_KINDS:
                if D & (c.reads | c.writes): n = max(n, {4: 8, 8: 12}[p.passes])
            if c.kind in valu_like and (p.srcC & c.writes): n = max(n, {4: 3, 8: 7}[p.passes])
        if pv:
            wv = vregs(p.writes); ws = sregs(p.writes)
            if c.kind == 'mfma' and (wv & c.reads): n = max(n, 2)
            if c.kind in VM_KINDS and (ws & c.reads): n = max(n, 5)
            if c.kind in valu_like and (ws & c.reads): n = max(n, 2)
            if c.kind == 'readlane' and (wv & c.reads): n = max(n, 1)
            if c.kind == 'readlane' and (ws & c.reads): n = max(n, 4)
            if p.kind == 'trans' and c.kind in valu_like + ('mfma',) and c.kind != 'trans' and (wv & c.reads): n = max(n, 1)
            if p.kind == 'trans' and c.kind == 'trans' and (wv & c.reads): n = max(n, 1)
            if c.dpp and (wv & c.reads): n = max(n, 2)
            if c.kind == 'permlane' and (wv & c.reads): n = max(n, 2)
            if 'exec' in p.writes and c.dpp: n = max(n, 5)
            if 'exec' in p.writes and c.kind == 'mfma': n = max(n, 4)
        if p.op.startswith('v_dot2') and (p.writes & (c.reads | c.writes)):
            if not (c.op == p.op and not (p.writes & (c.reads - c.writes)) ):
                n = max(n, 3)
        if p.kind in ('vstore',) and p.wide and (p.storedata & c.writes):
            n = max(n, 2 if c.kind in valu_like else 1)
        if p.kind == 'dswrite' and len(p.storedata) >= 3 and (p.storedata & c.writes):
            n = max(n, 2 if c.kind in valu_like else 1)
        if p.kind == 'salu' and 'm0' in p.writes and c.kind == 'dma': n = max(n, 1)
        return n

    def _hazards(self, ins):
        out = []
        hist = []
        WINDOW = 14
        nnop = 0
        for c in ins:
            if c.kind in ('directive',):
                out.append(c); continue
            if c.kind == 'label':
                out.append(c); continue
            need = 0
            dist = 0
            for p in reversed(hist):
                r = self._need_states(p, c)
                if r > dist: need = max(need, r - dist)
                dist += (int(p.text.split()[1], 0) + 1) if p.kind == 'nop' else 1
                if dist >= WINDOW: break
            while need > 0:
                k = min(need, 16)
                nop = parse(f's_nop {k-1}'); out.append(nop); hist.append(nop); need -= k; nnop += 1
            out.append(c); hist.append(c)
            if len(hist) > 2 * WINDOW: del hist[:WINDOW]
        self.nnop = nnop
        return out

    def text(self):
        ins = self._hazards(self._waits())
        lines = []
        for i in ins:
            if i.kind == 'label': lines.append(i.text)
            else: lines.append('    ' + i.text)
        return '\n'.join(lines) + '\n'

def kernel_block(name, body, vgpr, sgpr=100, accum=None):
    if accum is None: accum = min(256, (vgpr + 3) // 4 * 4)
    return f""".text
.globl {name}
.p2align 8
.type {name},@function
{name}:
{body}    s_endpgm
.section .rodata,"a"
.p2align 6
.amdhsa_kernel {name}
  .amdhsa_next_free_vgpr {vgpr}
  .amdhsa_next_free_sgpr {sgpr}
  .amdhsa_accum_offset {accum}
  .amdhsa_group_segment_fixed_size 0
  .amdhsa_kernarg_size 96
  .amdhsa_user_sgpr_count 2
  .amdhsa_user_sgpr_kernarg_segment_ptr 1
  .amdhsa_system_sgpr_workgroup_id_x 1
.end_amdhsa_kernel
"""
```

```python
import sys, struct
from common import *
def f2u(x): return struct.unpack('<I', struct.pack('<f', x))[0]
LOG2E = 1.4426950408889634
NAME = 'interleave_layers__spectral_fnet__glu_gated_glu__prompt'

sWAVE, sWG = 's20', 's21'
sC, sHALF, sJ = 's70', 's71', 's72'
sC1, sI1, sT0 = 's73', 's74', 's75'
SRD_X, SRD_HRE, SRD_HIM = 's[8:11]', 's[12:15]', 's[16:19]'
SRD_WG, SRD_WU, SRD_WD = 's[76:79]', 's[80:83]', 's[84:87]'
SRD_DBG, SRD_OUT = 's[88:91]', 's[92:95]'
RES = 240
vC16, vS16 = 250, 252
SC1 = ' sc1'
def line(k): return SYNC + 256 * k
L_B  = lambda layer: 0 + 16 * layer
L_C  = lambda layer: 32 + 16 * layer
L_D  = 64
L_AC = 96
L_AR = 104
SPIN_MAX = 1 << 16

class Mega:
    def __init__(self, diag=False, **opt):
        self.A = Asm(); self.diag = diag; self.nst = 0; self.names = []; self.uid = 0
        self.o = dict(b1_passes=[[0,1,2,3],[4,5],[6]], b1_R=4, b1_RA=3, b1_fill=4, b1_pre=2, b2_depth=6, sleep=0)
        self.o.update(opt)
    def lab(self, s):
        self.uid += 1; return f"L{self.uid}_{s}"
    def stamp(self, name):
        if not self.diag: return
        A = self.A; k = self.nst; self.nst += 1; self.names.append(name)
        assert k < 64
        A.drain(vm=False, ds=True)
        A("s_memrealtime s[58:59]", raw=True); A("s_memtime s[64:65]", raw=True); A("s_waitcnt lgkmcnt(0)", raw=True)
        A(f"v_writelane_b32 v238, s58, {k}", raw=True); A(f"v_writelane_b32 v239, s64, {k}", raw=True)
    def stamp_flush(self):
        if not self.diag: return
        A = self.A; l = self.lab('sf')
        A(f"s_cmp_lg_u32 {sWAVE}, 0"); A(f"s_cbranch_scc1 {l}")
        A(f"s_lshl_b32 s60, {sWG}, 9"); A(f"s_add_u32 s60, s60, {STAMP}")
        A("v_lshlrev_b32 v255, 2, v0", raw=True)
        A("buffer_store_dword v238, v255, s[96:99], s60 offen", raw=True)
        A("buffer_store_dword v239, v255, s[96:99], s60 offen offset:256", raw=True)
        A("s_waitcnt vmcnt(0)", raw=True)
        A.label(l)
    def dbgstamp(self, k):
        A = self.A; l = self.lab('dst')
        A(f"s_cmp_lg_u32 {sWAVE}, 0"); A(f"s_cbranch_scc1 {l}")
        A(f"s_mov_b32 s60, {4*(1+k)}"); A(f"s_cmp_eq_u32 {sWG}, 0"); A("s_cselect_b32 s63, 1, 0")
        A(f"s_cmp_eq_u32 {sWG}, 255"); A(f"s_cselect_b32 s60, {4*(5+k)}, s60"); A("s_cselect_b32 s63, 1, s63")
        A(f"s_cmp_eq_u32 {sWG}, 128"); A(f"s_cselect_b32 s60, {4*(9+k)}, s60"); A("s_cselect_b32 s63, 1, s63")
        A("s_cmp_eq_u32 s63, 0"); A(f"s_cbranch_scc1 {l}")
        A("s_memrealtime s[58:59]", raw=True); A("s_waitcnt lgkmcnt(0)", raw=True)
        A("v_mov_b32 v254, s58", raw=True); A("v_mov_b32 v255, 0", raw=True)
        A(f"buffer_store_dword v254, v255, {SRD_DBG}, s60 offen", raw=True)
        A.label(l)
    def one_lane(self, body):
        A = self.A; l = self.lab('ol')
        A(f"s_cmp_lg_u32 {sWAVE}, 0"); A(f"s_cbranch_scc1 {l}")
        A("s_mov_b64 exec, 1")
        for x in body: A(x, raw=True)
        A("s_mov_b64 exec, -1")
        A.label(l)
    def arrive(self, soff_code):
        A = self.A
        A.drain(); A("s_waitcnt vmcnt(0)")
        self.stamp('.drained')
        A("s_barrier")
        for x in soff_code: A(x)
        self.one_lane(["v_mov_b32 v254, 1", "v_mov_b32 v255, 0", f"buffer_atomic_add v254, v255, {SRD_WS}, s61 offen sc1"])
    def wait_ge(self, srd, soff_code, need, nlanes=1, lane_stride=0, lane_code=None, partB=None, mid=None):
        A = self.A; l = self.lab('w'); d = self.lab('wd'); sk = self.lab('ws')
        if partB:
            pb = self.lab('pb')
            A(f"s_cmp_eq_u32 {sWAVE}, 0"); A(f"s_cbranch_scc1 {pb}")
            partB(False)
            A.label(pb)
        if mid: mid()
        for x in soff_code: A(x)
        self.stamp('.prepoll')
        A(f"s_cmp_lg_u32 {sWAVE}, 0"); A(f"s_cbranch_scc1 {sk}")
        if lane_code:
            for x in lane_code: A(x, raw=True)
        else: A("v_mov_b32 v255, 0", raw=True)
        A("s_mov_b32 s62, 0")
        A.label(l)
        A(f"buffer_load_dword v254, v255, {srd}, s61 offen sc1", raw=True)
        A("s_waitcnt vmcnt(0)", raw=True)
        A(f"v_cmp_gt_u32 vcc, {need}, v254", raw=True)
        A("s_add_u32 s62, s62, 1")
        A("s_nop 1", raw=True)
        A("s_cmp_eq_u64 vcc, 0", raw=True); A(f"s_cbranch_scc1 {d}")
        if self.o['sleep']: A(f"s_sleep {self.o['sleep']}")
        A(f"s_cmp_lt_u32 s62, {SPIN_MAX}"); A(f"s_cbranch_scc1 {l}")
        A.label(d)
        A.label(sk)
        A("s_barrier")
        if partB:
            pb = self.lab('pb')
            A(f"s_cmp_lg_u32 {sWAVE}, 0"); A(f"s_cbranch_scc1 {pb}")
            partB(True)
            A.label(pb)
    def entry(self):
        A = self.A
        A("s_cmp_ge_u32 s2, 256"); A("s_cbranch_scc1 L_exit")
        load_srd(A, 4, KA['ws'], WS_USED)
        load_srd(A, 8, KA['x'], S*D*2); load_srd(A, 12, KA['hre'], D*D*2); load_srd(A, 16, KA['him'], D*D*2)
        load_srd(A, 76, KA['wg'], D*F*2); load_srd(A, 80, KA['wu'], D*F*2); load_srd(A, 84, KA['wd'], D*F*2)
        load_srd(A, 88, KA['dbg'], 256); load_srd(A, 92, KA['out'], S*D*2)
        A("v_lshrrev_b32 v1, 6, v0"); A("v_and_b32 v0, 63, v0"); A(f"v_readfirstlane_b32 {sWAVE}, v1"); A(f"s_mov_b32 {sWG}, s2")
        A(f"s_and_b32 s25, {sWG}, 7"); A(f"s_lshr_b32 s26, {sWG}, 3")
        A(f"s_and_b32 {sC}, s25, 3"); A(f"s_lshl_b32 {sC}, {sC}, 2"); A("s_lshr_b32 s27, s26, 3"); A(f"s_add_u32 {sC}, {sC}, s27")
        A(f"s_lshr_b32 {sHALF}, s26, 2"); A(f"s_and_b32 {sHALF}, {sHALF}, 1")
        A(f"s_lshr_b32 {sJ}, s25, 2"); A(f"s_lshl_b32 {sJ}, {sJ}, 2"); A("s_and_b32 s27, s26, 3"); A(f"s_add_u32 {sJ}, {sJ}, s27")
        A(f"s_and_b32 {sC1}, s25, 1"); A(f"s_lshl_b32 {sC1}, {sC1}, 3"); A("s_lshr_b32 s27, s26, 2"); A(f"s_add_u32 {sC1}, {sC1}, s27")
        A(f"s_lshr_b32 {sI1}, s25, 1"); A(f"s_lshl_b32 {sI1}, {sI1}, 2"); A("s_and_b32 s27, s26, 3"); A(f"s_add_u32 {sI1}, {sI1}, s27")
        A(f"s_mul_i32 {sT0}, {sI1}, 7"); A(f"s_min_u32 {sT0}, {sT0}, 101")
        A("s_waitcnt lgkmcnt(0)")
        if self.diag:
            A("s_mov_b32 s96, s4"); A("s_mov_b32 s97, s5"); A("s_mov_b32 s98, 0x4000000"); A("s_mov_b32 s99, 0x20000")
        self.stamp('start')
        if self.o.get('dbgstamp'): self.dbgstamp(0)
    def code_prefetch(self, nbytes):
        A = self.A
        A("s_getpc_b64 s[30:31]")
        A.label("L_pfpc")
        A("s_mov_b32 s32, s30"); A("s_and_b32 s33, s31, 0xffff"); A(f"s_mov_b32 s34, L_exit-L_pfpc"); A("s_mov_b32 s35, 0x20000")
        n = (nbytes + 32767) // 32768
        A("v_lshlrev_b32 v1, 7, v0"); A(f"s_lshl_b32 s36, {sWAVE}, 13"); A("v_add_u32 v1, s36, v1")
        for i in range(n):
            A(f"buffer_load_dword v{234+i}, v1, s[32:35], 0 offen", raw=True)
            if i + 1 < n: A("v_add_u32 v1, 0x8000, v1")
    def tile_roles(self):
        A = self.A; A(f"s_mov_b32 s22, {sC}"); A(f"s_mov_b32 s23, {sHALF}"); A(f"s_mov_b32 s24, {sJ}")

    def P_pre(self, PB):
        A = self.A; wave = sWAVE; wg = sWG
        self.p_wd = self.lab('pwd'); self.p_e1 = self.lab('pe1')
        A(f"s_cmp_ge_u32 {wg}, 243"); A(f"s_cbranch_scc1 {self.p_e1}")
        A(f"s_cmp_ge_u32 {wg}, 135"); A(f"s_cbranch_scc1 {self.p_wd}")
        s_udiv(A, 's40', wg, 5, 256)
        A(f"s_mul_i32 s41, s40, 5"); A(f"s_sub_u32 s41, {wg}, s41")
        A("v_lshrrev_b32 v1, 3, v0"); A("v_and_b32 v2, 7, v0"); A("v_and_b32 v3, 2, v1")
        A("v_xor_b32 v4, v2, v3"); A("v_xor_b32 v5, 4, v4"); A("v_mul_u32_u24 v6, 3456, v1")
        A("v_lshl_add_u32 v4, v4, 4, v6"); A("v_lshl_add_u32 v5, v5, 4, v6")
        A(f"s_lshl_b32 s42, s41, 7"); A(f"s_lshl_b32 s43, {wave}, 5"); A("s_add_u32 s42, s42, s43")
        A("s_mul_i32 s42, s42, 3456"); A("s_lshl_b32 s43, s40, 7"); A("s_add_u32 s42, s42, s43")
        A(f"s_lshl_b32 s44, {wave}, 12"); A(f"s_add_u32 s44, s44, {PB}")
        for i in range(4):
            A(f"s_add_u32 m0, s44, {i*1024}"); A(f"s_add_u32 s45, s42, {i*8*3456}")
            A(f"buffer_load_dwordx4 v4, {SRD_WG}, s45 offen lds", raw=True)
            A(f"s_add_u32 m0, s44, {16384+i*1024}"); A("s_nop 0", raw=True)
            A(f"buffer_load_dwordx4 v5, {SRD_WU}, s45 offen lds", raw=True)
        A(f"s_branch {self.p_e1}")
        A.label(self.p_wd)
        A(f"s_sub_u32 s40, {wg}, 135"); A("s_mul_i32 s42, s40, 20480")
        for i in range(5):
            A(f"s_mul_i32 s43, {wave}, 5"); A(f"s_add_u32 s43, s43, {i}"); A("s_lshl_b32 s44, s43, 6")
            A("v_add_u32 v1, s44, v0")
            v_udiv(A, 'v2', 'v1', 80, 1280)
            A("v_mul_u32_u24 v3, 80, v2"); A("v_sub_u32 v3, v1, v3")
            A("v_and_b32 v4, 3, v2"); A("v_bfe_u32 v5, v2, 3, 1"); A("v_lshl_or_b32 v4, v5, 2, v4")
            A("v_lshlrev_b32 v4, 1, v4"); A("v_xor_b32 v3, v3, v4")
            A("v_mul_u32_u24 v2, 1280, v2"); A(f"v_lshl_add_u32 v{20+i}, v3, 4, v2")
            A("s_lshl_b32 s44, s43, 10"); A(f"s_add_u32 m0, s44, {PB}"); A("s_nop 0", raw=True)
            A(f"buffer_load_dwordx4 v{20+i}, {SRD_WD}, s42 offen lds", raw=True)
        A.label(self.p_e1)
    def P_main(self, PB, nyounger):
        A = self.A; wave = sWAVE; wg = sWG; ws = SRD_WS
        wd = self.lab('pmwd'); done = self.lab('pmdone')
        A(f"s_waitcnt vmcnt({nyounger})", raw=True); A("s_barrier")
        A(f"s_cmp_ge_u32 {wg}, 243"); A(f"s_cbranch_scc1 {done}")
        A(f"s_cmp_ge_u32 {wg}, 135"); A(f"s_cbranch_scc1 {wd}")
        R = dict(raw=True)
        A("v_lshrrev_b32 v1, 4, v0"); A("v_and_b32 v2, 1, v1"); A("v_lshrrev_b32 v3, 1, v1"); A("v_bfe_u32 v6, v0, 2, 2"); A("v_and_b32 v7, 3, v0")
        A("v_lshl_add_u32 v8, v3, 3, v6"); A("v_lshlrev_b32 v8, 7, v8"); A("v_lshl_add_u32 v8, v2, 14, v8")
        A("v_and_b32 v9, 1, v7"); A(f"s_lshl_b32 s46, {wave}, 1"); A("v_add_u32 v9, s46, v9")
        A("v_and_b32 v10, 2, v6"); A("v_lshl_or_b32 v10, v2, 2, v10"); A("v_xor_b32 v9, v9, v10")
        A("v_lshl_add_u32 v8, v9, 4, v8"); A("v_lshrrev_b32 v7, 1, v7"); A("v_lshl_add_u32 v8, v7, 3, v8"); A(f"v_add_u32 v8, {PB}, v8")
        A(f"s_lshl_b32 s46, s40, 2"); A(f"s_add_u32 s46, s46, {wave}")
        A("s_mul_i32 s47, s46, 40"); A("s_lshl_b32 s48, s41, 3"); A("s_add_u32 s47, s47, s48"); A("s_lshl_b32 s47, s47, 10"); A(f"s_add_u32 s47, s47, {W1F}")
        A("v_lshlrev_b32 v11, 4, v0"); A("v_mov_b32 v12, 0"); A("s_mov_b32 s49, 0x3f803f80")
        for q in range(8):
            r = 64 + 4 * q
            A(f"ds_read_b64_tr_b16 v[{r}:{r+1}], v8 offset:{q*2048}", **R); A(f"ds_read_b64_tr_b16 v[{r+2}:{r+3}], v8 offset:{q*2048+512}", **R)
            if q == 3: A("s_waitcnt lgkmcnt(0)", **R)
        A("s_waitcnt lgkmcnt(0)", **R)
        for q in range(8):
            r = 64 + 4 * q
            A(f"s_add_u32 s48, s47, {q*1024}")
            A(f"buffer_store_dwordx4 v[{r}:{r+3}], v11, {ws}, s48 offen{SC1}", **R)
            for j in range(4): A(f"v_dot2c_f32_bf16 v12, s49, v{r+j}")
        A("v_mov_b32 v13, v12"); A("v_permlane32_swap_b32 v12, v13"); A("v_add_f32 v12, v12, v13")
        A("s_mul_i32 s47, s41, 108"); A("s_add_u32 s47, s47, s46"); A("s_lshl_b32 s47, s47, 7"); A(f"s_add_u32 s47, s47, {CSP}")
        A("v_and_b32 v13, 31, v0"); A("v_lshlrev_b32 v13, 2, v13")
        A(f"buffer_store_dword v12, v13, {ws}, s47 offen{SC1}", **R)
        A(f"s_branch {done}")
        A.label(wd)
        A("v_lshrrev_b32 v1, 4, v0"); A("v_lshrrev_b32 v2, 1, v1"); A("v_and_b32 v3, 1, v1"); A("v_bfe_u32 v6, v0, 2, 2"); A("v_and_b32 v7, 3, v0")
        A("v_lshl_add_u32 v8, v3, 3, v6"); A("v_lshl_or_b32 v10, v3, 2, v6"); A("v_lshlrev_b32 v10, 1, v10"); A("v_mul_u32_u24 v8, 1280, v8"); A(f"v_add_u32 v8, {PB}, v8")
        A("s_and_b32 s46, s40, 1"); A("s_lshr_b32 s47, s40, 1")
        A("v_and_b32 v11, 31, v0"); A("s_lshl_b32 s48, s46, 5"); A("v_add_u32 v11, s48, v11"); A("v_lshlrev_b32 v11, 4, v11")
        for i in range(5):
            A(f"s_mul_i32 s48, {wave}, 10"); A(f"s_add_u32 s48, s48, {2*i}"); A("v_add_u32 v1, s48, v2")
            A("v_lshrrev_b32 v3, 1, v7"); A("v_lshl_add_u32 v3, v1, 1, v3"); A("v_xor_b32 v3, v3, v10"); A("v_lshl_add_u32 v3, v3, 4, v8")
            A("v_and_b32 v4, 1, v7"); A("v_lshl_add_u32 v3, v4, 3, v3")
            r = 64 + 4 * i
            A(f"ds_read_b64_tr_b16 v[{r}:{r+1}], v3", **R); A(f"ds_read_b64_tr_b16 v[{r+2}:{r+3}], v3 offset:{4*1280}", **R)
            v_udiv(A, 'v4', 'v1', 5, 40)
            A("v_mul_u32_u24 v5, 5, v4"); A("v_sub_u32 v5, v1, v5"); A("v_mul_u32_u24 v4, 270, v4"); A("v_add_u32 v4, v4, v5")
            A("s_mul_i32 s48, s47, 5"); A("v_add_u32 v4, s48, v4"); A(f"v_lshl_add_u32 v{90+i}, v4, 10, v11")
        A("s_waitcnt lgkmcnt(0)", **R)
        A(f"s_mov_b32 s48, {WDF}")
        for i in range(5):
            r = 64 + 4 * i
            A(f"buffer_store_dwordx4 v[{r}:{r+3}], v{90+i}, {ws}, s48 offen{SC1}", **R)
        A.label(done)

    STG = 36864
    def A1_setup(self, x_off):
        A = self.A; wave = sWAVE
        self.tile_roles()
        A(f"s_cmp_lt_u32 {wave}, 2")
        A(f"s_cselect_b32 s36, s12, s16"); A(f"s_cselect_b32 s37, s13, s17"); A(f"s_mov_b32 s38, {D*D*2}"); A("s_mov_b32 s39, 0x20000")
        A("v_lshrrev_b32 v14, 4, v0"); A("v_and_b32 v15, 15, v0")
        for i in range(4):
            A(f"v_add_u32 v3, {4*i}, v14"); A("v_xor_b32 v3, v15, v3")
            A(f"v_mul_u32_u24 v4, 163840, v14"); A(f"v_lshl_add_u32 v{16+i}, v3, 4, v4")
        A(f"s_lshl_b32 s28, {wave}, 2"); A("v_add_u32 v3, s28, v14"); A("v_xor_b32 v3, v15, v3")
        A("v_mul_u32_u24 v4, 1280, v14"); A(f"v_lshl_add_u32 v20, v3, 4, v4")
        A(f"s_or_b32 s29, s24, {wave}"); A("s_cmp_eq_u32 s29, 0"); A(f"s_cselect_b32 s29, {320*1280}, 0")
        A("v_cmp_eq_u32 vcc, 0, v14"); A(f"v_mov_b32 v5, s29"); A(f"v_cndmask_b32 v5, 0, v5, vcc"); A(f"v_add_u32 v21, v20, v5")
        A(f"s_lshl_b32 s29, s23, 2"); A(f"s_add_u32 s29, s29, {wave}"); A("s_lshl_b32 s29, s29, 4"); A("s_add_u32 s29, s29, s22"); A("s_mul_i32 s29, s29, 1280")
        if x_off: A(f"s_add_u32 s29, s29, {x_off}")
        A(f"s_mul_i32 s30, s24, 40"); A(f"s_and_b32 s31, {wave}, 1"); A("s_lshl_b32 s31, s31, 2"); A("s_add_u32 s30, s30, s31"); A("s_mul_i32 s30, s30, 1280")
        A(f"s_lshl_b32 s31, {wave}, 12"); A(f"s_lshl_b32 s32, {wave}, 10"); A("s_add_u32 s32, s32, 16384")
        for qq in range(4):
            A(f"v_add_u32 v3, {4*qq}, v14"); A("v_xor_b32 v3, v15, v3"); A("v_lshlrev_b32 v3, 4, v3"); A("v_lshl_add_u32 v3, v15, 8, v3")
            A(f"v_add_u32 v{24+qq}, s31, v3"); A(f"v_add_u32 v{28+qq}, {2*self.STG}, v{24+qq}")
            A(f"v_add_u32 v{32+qq}, 16384, v3"); A(f"v_add_u32 v{36+qq}, {2*self.STG}, v{32+qq}")
    def A1_dma_x(self, s, x_srd, aux):
        slot = (s % 4) * self.STG
        return [[f"s_add_u32 m0, s31, {slot + i*1024}", f"s_add_u32 s33, s29, {i*4*163840 + s*256}",
                 (f"buffer_load_dwordx4 v{16+i}, {x_srd}, s33 offen{aux} lds", f"a1s{s}")] for i in range(4)]
    def A1_dma_w(self, s):
        slot = (s % 4) * self.STG
        return [[f"s_add_u32 m0, s32, {slot + ct*4096}", f"s_add_u32 s33, s30, {ct*8*1280 + s*256}",
                 (f"buffer_load_dwordx4 v{21 if ct == 0 else 20}, s[36:39], s33 offen lds", f"a1s{s}")] for ct in range(5)]
    def emit(self, x):
        if isinstance(x, tuple): self.A(x[0], tag=x[1])
        else: self.A(x)
    def emitl(self, L, raw=False):
        for d in L:
            for x in d:
                if raw:
                    t = x[0] if isinstance(x, tuple) else x
                    if t.startswith('buffer_') and 'lds' in t.split(): self.A("s_nop 0", raw=True)
                    self.A(t, raw=True)
                else: self.emit(x)
    def dft16_consts(self):
        A = self.A; t = 48
        A(f"v_and_b32 v{t}, 15, v0"); A(f"v_lshrrev_b32 v{t+1}, 4, v0"); A(f"v_lshlrev_b32 v{t+1}, 2, v{t+1}")
        for j in range(4):
            A(f"v_add_u32 v{t+2}, {j}, v{t+1}"); A(f"v_mul_u32_u24 v{t+2}, v{t}, v{t+2}"); A(f"v_and_b32 v{t+2}, 15, v{t+2}")
            A(f"v_cvt_f32_u32 v{t+2}, v{t+2}"); A(f"v_mul_f32 v{t+2}, {f2u(1/16):#x}, v{t+2}")
            A(f"v_cos_f32 v{t+3+j}, v{t+2}"); A(f"v_sin_f32 v{t+7+j}, v{t+2}")
        for p in range(2):
            A(f"v_cvt_pk_bf16_f32 v{vC16+p}, v{t+3+2*p}, v{t+4+2*p}"); A(f"v_cvt_pk_bf16_f32 v{vS16+p}, v{t+7+2*p}, v{t+8+2*p}")
    def A1_main(self, issued, x_srd, aux, Z):
        A = self.A; wave = sWAVE; ws = SRD_WS
        ACC = 64; FA = 96; FB = 112; vSum, vSq = 44, 45
        A(f"v_mov_b32 v{vSum}, 0"); A(f"v_mov_b32 v{vSq}, 0"); A("s_mov_b32 s34, 0x3f803f80")
        def reads(k):
            s, qq = divmod(k, 4); slot = s % 4; hi = 4 if slot >= 2 else 0; off = (slot % 2) * self.STG
            fa = FA + 4 * (k % 2); fb = FB + 20 * (k % 2)
            L = [f"ds_read_b128 v[{fa}:{fa+3}], v{24+hi+qq} offset:{off}"]
            for ct in range(5): L.append(f"ds_read_b128 v[{fb+4*ct}:{fb+4*ct+3}], v{32+hi+qq} offset:{off+ct*4096}")
            return L
        dq = []
        issued = set(issued)
        def enter(s):
            assert s in issued
            A.wait_vm(f"a1s{s}"); A("s_barrier")
            for nx in range(5):
                if nx not in issued and nx <= s + 3:
                    dq.extend(self.A1_dma_x(nx, x_srd, aux)); dq.extend(self.A1_dma_w(nx)); issued.add(nx)
        enter(0)
        for x in reads(0): A(x)
        for k in range(20):
            nk = k + 1
            if nk < 20:
                if nk % 4 == 0:
                    while dq: self.emitl([dq.pop(0)])
                    A.wait_ds(); enter(nk // 4)
                rl = reads(nk)
            else: rl = []
            fa = FA + 4 * (k % 2); fb = FB + 20 * (k % 2)
            for ct in range(5):
                a = ACC + 4 * ct; c = "0" if k == 0 else f"v[{a}:{a+3}]"
                A(f"v_mfma_f32_16x16x32_bf16 v[{a}:{a+3}], v[{fa}:{fa+3}], v[{fb+4*ct}:{fb+4*ct+3}], {c}")
                if rl: A(rl.pop(0))
                if ct < 4:
                    A(f"v_dot2c_f32_bf16 v{vSq}, v{fa+ct}, v{fa+ct}"); A(f"v_dot2c_f32_bf16 v{vSum}, s34, v{fa+ct}")
                if dq: self.emitl([dq.pop(0)])
            while rl: A(rl.pop(0))
        self.stamp('a1_loop')
        for v in (vSum, vSq):
            A(f"v_mov_b32 v3, v{v}"); A(f"v_permlane16_swap_b32 v{v}, v3"); A(f"v_add_f32 v{v}, v{v}, v3")
            A(f"v_mov_b32 v3, v{v}"); A(f"v_permlane32_swap_b32 v{v}, v3"); A(f"v_add_f32 v{v}, v{v}, v3")
        A(f"v_mul_f32 v{vSum}, {f2u(1/640):#x}, v{vSum}"); A(f"v_mul_f32 v{vSq}, {f2u(1/640):#x}, v{vSq}")
        A(f"v_fma_f32 v{vSq}, -v{vSum}, v{vSum}, v{vSq}"); A(f"v_add_f32 v{vSq}, {f2u(1e-5):#x}, v{vSq}")
        A(f"v_rsq_f32 v{vSq}, v{vSq}")
        A("v_lshlrev_b32 v3, 4, v14")
        for r in range(4):
            A(f"v_add_u32 v4, {4*r}, v3"); A(f"ds_bpermute_b32 v{48+r}, v4, v{vSq}")
        PP = 160; PQ = 180; ZV = 200
        for ct in range(5):
            a = ACC + 4 * ct
            for r in range(4): A(f"v_mul_f32 v{a+r}, v{a+r}, v{48+r}")
        for ct in range(5):
            a = ACC + 4 * ct; b = FB + 2 * ct
            A(f"v_cvt_pk_bf16_f32 v{b}, v{a}, v{a+1}"); A(f"v_cvt_pk_bf16_f32 v{b+1}, v{a+2}, v{a+3}")
        for ct in range(5):
            b = FB + 2 * ct
            A(f"v_mfma_f32_16x16x16_bf16 v[{PP+4*ct}:{PP+4*ct+3}], v[{vC16}:{vC16+1}], v[{b}:{b+1}], 0")
            A(f"v_mfma_f32_16x16x16_bf16 v[{PQ+4*ct}:{PQ+4*ct+3}], v[{vS16}:{vS16+1}], v[{b}:{b+1}], 0")
        A("v_mov_b32 v5, 1.0"); A("v_mov_b32 v6, -1.0"); A("v_cmp_gt_u32 vcc, 8, v15"); A("v_cndmask_b32 v5, v6, v5, vcc")
        A("s_barrier")
        for ct in range(5):
            for r in range(4):
                A(f"v_fmac_f32_dpp v{PP+4*ct+r}, v{PQ+4*ct+r}, v5 row_ror:8 row_mask:0xf bank_mask:0xf")
        A("v_and_b32 v3, 7, v15"); A("v_lshrrev_b32 v4, 3, v15")
        A("v_lshlrev_b32 v3, 4, v3"); A("v_lshl_add_u32 v3, v4, 3, v3")
        A("v_mul_u32_u24 v4, 2560, v14"); A("v_add_u32 v3, v3, v4")
        A(f"s_lshl_b32 s33, {wave}, 1"); A("v_add_u32 v3, s33, v3")
        for ct in range(5):
            for p in range(2):
                z = ZV + 2 * ct + p
                A(f"v_cvt_pk_bf16_f32 v{z}, v{PP+4*ct+2*p}, v{PP+4*ct+2*p+1}")
                A(f"ds_write_b16 v3, v{z} offset:{(2*p)*640 + ct*128}")
                A(f"ds_write_b16_d16_hi v3, v{z} offset:{(2*p+1)*640 + ct*128}")
        A(f"s_lshl_b32 s33, {wave}, 6"); A("v_add_u32 v7, s33, v0")
        A("s_lshl_b32 s33, s22, 1"); A("s_add_u32 s33, s33, s23"); A("s_mul_i32 s33, s33, 320"); A("s_mul_i32 s35, s24, 40"); A("s_add_u32 s33, s33, s35")
        A("s_lshl_b32 s33, s33, 4"); A(f"s_add_u32 s33, s33, {Z}")
        for u in range(3):
            A(f"v_add_u32 v8, {256*u}, v7")
            v_udiv(A, 'v9', 'v8', 40, 768)
            A("v_mul_u32_u24 v10, 40, v9"); A("v_sub_u32 v10, v8, v10")
            A(f"v_mul_u32_u24 v9, {32*5120}, v9"); A(f"v_lshl_add_u32 v{12+u if u < 2 else 11}, v10, 4, v9")
            A(f"v_lshlrev_b32 v{52+u}, 4, v8")
        A.drain(vm=False); A("s_barrier")
        for u in range(3): A(f"ds_read_b128 v[{ZV+12+4*u}:{ZV+15+4*u}], v{52+u}")
        for u in range(2):
            A(f"buffer_store_dwordx4 v[{ZV+12+4*u}:{ZV+15+4*u}], v{12+u}, {ws}, s33 offen{SC1}", tag='z')
        l = self.lab('zs')
        A.drain(vm=False)
        A(f"s_cmp_ge_u32 {wave}, 2"); A(f"s_cbranch_scc1 {l}")
        A(f"buffer_store_dwordx4 v[{ZV+20}:{ZV+23}], v11, {ws}, s33 offen{SC1}", raw=True)
        A.label(l)

    def A2_consts(self):
        A = self.A; wave = sWAVE; t = 48; vB = 96
        self.tile_roles()
        A(f"v_and_b32 v{t}, 15, v0"); A(f"v_lshrrev_b32 v{t+1}, 4, v0")
        A(f"s_lshl_b32 s28, s23, 2"); A(f"s_add_u32 s28, s28, {wave}"); A("s_lshl_b32 s28, s28, 4"); A("s_add_u32 s28, s28, s22")
        A(f"v_lshl_add_u32 v{t}, v{t}, 7, s28")
        A(f"v_lshrrev_b32 v{t+2}, 1, v{t+1}"); A(f"v_and_b32 v{t+1}, 1, v{t+1}"); A(f"v_lshl_add_u32 v{t+1}, v{t+1}, 6, v{t+2}")
        A(f"v_mul_u32_u24 v{t+1}, v{t}, v{t+1}")
        A(f"s_cmp_lt_u32 s24, 4"); A(f"s_mov_b32 s29, {f2u(1/2048):#x}"); A(f"s_cselect_b32 s29, s29, {f2u(-1/2048):#x}")
        for q in range(8):
            for i in range(4):
                k = 2 * q + 16 * i
                A(f"v_mad_u32_u24 v{t+2+i}, v{t}, {k}, v{t+1}")
                A(f"v_and_b32 v{t+2+i}, 0x7ff, v{t+2+i}")
                A(f"v_cvt_f32_u32 v{t+2+i}, v{t+2+i}")
                A(f"v_mul_f32 v{t+2+i}, s29, v{t+2+i}")
            for i in range(4): A(f"v_cos_f32 v{t+6+i}, v{t+2+i}")
            for i in range(4): A(f"v_sin_f32 v{t+2+i}, v{t+2+i}")
            b = vB + 4 * q
            A(f"v_cvt_pk_bf16_f32 v{b}, v{t+6}, v{t+7}"); A(f"v_cvt_pk_bf16_f32 v{b+1}, v{t+8}, v{t+9}")
            A(f"v_cvt_pk_bf16_f32 v{b+2}, v{t+2}, v{t+3}"); A(f"v_cvt_pk_bf16_f32 v{b+3}, v{t+4}, v{t+5}")
    def A2_setup(self):
        A = self.A; wave = sWAVE
        self.tile_roles()
        A("v_and_b32 v1, 15, v0"); A("v_lshrrev_b32 v2, 4, v0"); A(f"v_lshlrev_b32 v12, 4, v0")
        A("s_sub_u32 s28, 16, s22"); A("s_and_b32 s28, s28, 15")
        A("s_cmp_lt_u32 s24, 4"); A("s_cselect_b32 s28, s22, s28")
        A("s_mul_i32 s29, s24, 80"); A("s_sub_u32 s30, 640, s29"); A("s_cmp_lt_u32 s24, 4"); A("s_cselect_b32 s29, s29, s30")
        A("s_cselect_b32 s32, 16, -16"); A("s_lshl_b32 s31, s32, 4")
        A("v_mul_lo_u32 v3, s32, v1"); A(f"v_mul_u32_u24 v4, 5120, v2"); A(f"v_add_u32 v3, v3, v4")
        A("s_lshl_b32 s33, s29, 4"); A(f"v_add_u32 v10, s33, v3")
        A("s_cmp_eq_u32 s24, 4"); A("s_cselect_b32 s33, 5120, 0")
        A("v_cmp_eq_u32 vcc, 0, v1"); A("v_mov_b32 v5, s33"); A("v_cndmask_b32 v5, 0, v5, vcc"); A(f"v_sub_u32 v11, v10, v5")
        A(f"s_mul_i32 s34, s28, {32*5120}"); A(f"s_mul_i32 s35, {wave}, {2*4*5120}"); A("s_add_u32 s34, s34, s35")
        A(f"s_mul_i32 s35, {wave}, 10240")
        A(f"s_lshl_b32 s38, s23, 2"); A(f"s_add_u32 s38, s38, {wave}")
    def A2_main(self, Z, XF, ST):
        A = self.A; wave = sWAVE; ws = SRD_WS
        vB = 96; ACC = 64; FA = 128
        A(f"s_add_u32 s34, s34, {Z}")
        for qq in range(2):
            for ct in range(5):
                A(f"s_mul_i32 s36, s31, {ct}"); A("s_add_u32 s36, s36, s34")
                if qq: A(f"s_add_u32 s36, s36, {4*5120}")
                A(f"s_add_u32 m0, s35, {(qq*5+ct)*1024}")
                A(f"buffer_load_dwordx4 v{11 if ct == 0 else 10}, {ws}, s36 offen{SC1} lds", tag='z2')
        A.wait_vm('z2'); A("s_barrier")
        self.stamp('a2_z')
        def reads(q):
            return [f"ds_read_b128 v[{FA+20*(q%2)+4*ct}:{FA+20*(q%2)+4*ct+3}], v12 offset:{(q*5+ct)*1024}" for ct in range(5)]
        for x in reads(0): A(x)
        for q in range(8):
            rl = reads(q + 1) if q < 7 else []
            for ct in range(5):
                a = ACC + 4 * ct; c = "0" if q == 0 else f"v[{a}:{a+3}]"; f = FA + 20 * (q % 2) + 4 * ct
                A(f"v_mfma_f32_16x16x32_bf16 v[{a}:{a+3}], v[{f}:{f+3}], v[{vB+4*q}:{vB+4*q+3}], {c}")
                if rl: A(rl.pop(0))
        A("s_cmp_eq_u32 s24, 0"); A("s_cselect_b32 s40, 0, 1")
        A("v_lshrrev_b32 v3, 1, v2"); A("v_and_b32 v4, 1, v2"); A("v_lshlrev_b32 v5, 4, v1"); A("v_lshl_add_u32 v5, v3, 8, v5"); A("v_lshl_add_u32 v13, v4, 3, v5")
        A("s_mul_i32 s36, s22, 163840"); A("s_mul_i32 s37, s38, 20480"); A("s_add_u32 s36, s36, s37"); A("s_mul_i32 s37, s24, 2560"); A("s_add_u32 s36, s36, s37"); A(f"s_add_u32 s36, s36, {XF}")
        A("v_mov_b32 v6, 0"); A("v_or_b32 v5, s40, v2"); A("v_cmp_eq_u32 vcc, 0, v5"); A(f"v_cndmask_b32 v{ACC}, v{ACC}, v6, vcc")
        A("v_mov_b32 v16, 0"); A("v_mov_b32 v17, 0")
        for ct in range(5):
            a = ACC + 4 * ct
            for p in range(2):
                rr = RES + 2 * ct + p
                A(f"v_lshlrev_b32 v14, 16, v{rr}"); A(f"v_and_b32 v15, 0xffff0000, v{rr}")
                A(f"v_add_f32 v{a+2*p}, v{a+2*p}, v14"); A(f"v_add_f32 v{a+2*p+1}, v{a+2*p+1}, v15")
                A(f"v_cvt_pk_bf16_f32 v{rr}, v{a+2*p}, v{a+2*p+1}")
            A(f"buffer_store_dwordx2 v[{RES+2*ct}:{RES+2*ct+1}], v13, {ws}, s36 offen offset:{ct*512}{SC1}", tag='xf')
        for ct in range(5):
            a = ACC + 4 * ct
            for r in range(4):
                A(f"v_add_f32 v16, v16, v{a+r}"); A(f"v_fmac_f32 v17, v{a+r}, v{a+r}")
        for v in (16, 17):
            A(f"v_mov_b32 v3, v{v}"); A(f"v_permlane16_swap_b32 v{v}, v3"); A(f"v_add_f32 v{v}, v{v}, v3")
            A(f"v_mov_b32 v3, v{v}"); A(f"v_permlane32_swap_b32 v{v}, v3"); A(f"v_add_f32 v{v}, v{v}, v3")
        A("s_lshl_b32 s36, s22, 13"); A("s_lshr_b32 s37, s24, 1"); A("s_lshl_b32 s37, s37, 11"); A("s_add_u32 s36, s36, s37")
        A("s_lshl_b32 s37, s38, 8"); A("s_add_u32 s36, s36, s37"); A("s_and_b32 s37, s24, 1"); A("s_lshl_b32 s37, s37, 3"); A("s_add_u32 s36, s36, s37"); A(f"s_add_u32 s36, s36, {ST}")
        A("v_lshlrev_b32 v5, 4, v1")
        A(f"buffer_store_dwordx2 v[16:17], v5, {ws}, s36 offen{SC1}", tag='st')

    def B1_pre(self, XF, ST, HH):
        A = self.A; wave = sWAVE; ws = SRD_WS; o = self.o
        R = o['b1_R']; CSL = R * 16384; self.CSL = CSL
        vX, vW, vHH, vCS = 10, 11, 12, 13
        A(f"s_mov_b32 s22, {sC1}"); A(f"s_mov_b32 s23, {sI1}"); A(f"s_mov_b32 s24, {sT0}")
        A("v_and_b32 v1, 31, v0"); A("v_lshrrev_b32 v2, 5, v0"); A("v_lshrrev_b32 v3, 4, v1"); A("v_and_b32 v4, 15, v0")
        A("v_lshlrev_b32 v5, 4, v4"); A(f"v_lshl_add_u32 v5, v2, 8, v5")
        A(f"v_mul_u32_u24 v6, 20480, v3"); A(f"v_add_u32 v{vX}, v6, v5")
        A(f"v_lshl_add_u32 v{vHH}, v3, 10, v5"); A(f"v_lshlrev_b32 v{vW}, 4, v0")
        A(f"v_lshlrev_b32 v{vCS}, 4, v2"); A(f"v_add_u32 v{vCS}, {CSL}, v{vCS}"); A(f"v_add_u32 v14, 0x10000, v{vW}")
        A(f"s_mul_i32 s28, s22, 163840"); A(f"s_mul_i32 s29, {wave}, 40960"); A("s_add_u32 s28, s28, s29"); A(f"s_add_u32 s28, s28, {XF}")
        A(f"s_mul_i32 s30, s24, 40960"); A(f"s_lshl_b32 s29, {wave}, 10"); A("s_add_u32 s30, s30, s29"); A(f"s_add_u32 s30, s30, {W1F}")
        A(f"s_mul_i32 s31, s22, 442368"); A(f"s_lshr_b32 s29, {wave}, 1"); A("s_mul_i32 s29, s29, 221184"); A("s_add_u32 s31, s31, s29")
        A(f"s_and_b32 s29, {wave}, 1"); A("s_lshl_b32 s29, s29, 11"); A("s_add_u32 s31, s31, s29"); A(f"s_add_u32 s31, s31, {HH}")
        for P in (1, 2, 3, 4): A(f"s_mul_i32 s{32+P}, {wave}, {P*1024}")
        A(f"v_lshlrev_b32 v7, 4, v1"); A(f"v_lshl_add_u32 v7, v2, 12, v7")
        A(f"s_lshl_b32 s42, s22, 13"); A(f"s_lshl_b32 s37, {wave}, 9"); A("s_add_u32 s42, s42, s37"); A(f"s_add_u32 s42, s42, {ST}")
        A(f"s_lshl_b32 s37, {wave}, 8"); A("v_lshlrev_b32 v8, 2, v0"); A("v_add_u32 v8, s37, v8")
        A(f"s_lshl_b32 s29, s24, 7"); A(f"s_add_u32 s29, s29, {CSP}")
        for k in range(5):
            A(f"buffer_load_dword v{20+k}, v8, {ws}, s29 offen{SC1}", tag='csp')
            if k < 4: A(f"s_add_u32 s29, s29, {108*128}")
        stages = []
        for pi, tiles in enumerate(o['b1_passes']):
            P = len(tiles); KS = 4 if P >= 3 else 8
            for q0 in range(0, 40, KS): stages.append(dict(P=P, tiles=tiles, q0=q0, KS=KS, pi=pi))
        self.b1_stages = stages; self.b1_wdone = set(); self.b1_wcnt = {}
        npre = min(o['b1_pre'], R - 2); nA = min(o.get('b1_preA', 2), npre)
        for s in range(nA): self.b1_emitl(self.b1_dma_stage(s))
        def partB(raw):
            for s in range(nA, npre):
                if raw: self.emitl(self.b1_dma_stage(s), raw=True)
                else: self.b1_emitl(self.b1_dma_stage(s))
        self.b1_partB = partB
        A("v_add_f32 v20, v20, v21"); A("v_add_f32 v22, v22, v23"); A("v_add_f32 v20, v20, v24"); A("v_add_f32 v20, v20, v22")
        A(f"v_add_u32 v8, {CSL}, v8"); A("ds_write_b32 v8, v20")
        self.b1_npre = npre
    def b1_dma_stage(self, s):
        st = self.b1_stages[s]; out = []; slot = (s % self.o['b1_R']) * 16384
        for rep in range(st['KS'] // 4):
            for ti, t in enumerate(st['tiles']):
                ldsoff = slot + (rep * 4 * st['P'] + ti) * 1024
                goff = (t * 40 + st['q0'] + 4 * rep) * 1024
                out.append([f"s_add_u32 m0, s{32+st['P']}, {ldsoff}", f"s_add_u32 s38, s30, {goff}",
                            (f"buffer_load_dwordx4 v11, {SRD_WS}, s38 offen{SC1} lds", f"w{s}")])
        return out
    def b1_emit(self, x):
        self.emit(x)
        if isinstance(x, tuple):
            if x[1].startswith('x'): self.b1_xdone.add(int(x[1][1:]))
            if x[1].startswith('w'):
                self.b1_wcnt[x[1]] = self.b1_wcnt.get(x[1], 0) + 1
                si = int(x[1][1:]); st = self.b1_stages[si]
                if self.b1_wcnt[x[1]] == st['P'] * st['KS'] // 4: self.b1_wdone.add(si)
    def b1_emitl(self, L):
        for d in L:
            for x in d: self.b1_emit(x)
    def B1_main(self, b2w=None):
        A = self.A; ws = SRD_WS; o = self.o
        R = o['b1_R']; RA = o['b1_RA']; CSL = self.CSL; stages = self.b1_stages; NSTG = len(stages)
        WB = 32; NB = RA + 1; vNm, vStd, vR1 = 56, 57, 58
        ACCB = o.get('b1_acc', [[64, 80, 96, 112], [128, 144], [64]])
        vX, vW, vHH, vCS = 10, 11, 12, 13; CSR = 200; OUT = [216, 220]
        LAT = o.get('b1_lat', 28); pace = o.get('b1_pace', 2.1)
        self.b1_xdone = set()
        frags = []
        for s, st in enumerate(stages):
            slot = (s % R) * 16384
            for qq in range(st['KS']):
                for ti, t in enumerate(st['tiles']):
                    frags.append((s, slot + (qq * st['P'] + ti) * 1024, t, st['q0'] + qq))
        NF = len(frags)
        first_of_stage = {}; first_of_q = {}
        for f, (s, addr, t, q) in enumerate(frags):
            first_of_stage.setdefault(s, f); first_of_q.setdefault(q, f)
        memq = []
        lastx = [None]
        def xload(q):
            g = []
            g.append(f"s_add_u32 s39, s28, {(q // 8) * 4096}")
            g.append((f"buffer_load_dwordx4 a[{4*q}:{4*q+3}], v{vX}, {ws}, s39 offen offset:{(q % 8) * 512}{SC1}", f"x{q}"))
            return g
        for q in range(40): memq.append(dict(dl=first_of_q[q] - LAT, av=-1, grp=xload(q), key=('x', q)))
        for s in range(self.b1_npre, NSTG):
            for d in self.b1_dma_stage(s):
                memq.append(dict(dl=first_of_stage[s] - RA - LAT, av=s - (R - 2), grp=d, key=('w', s)))
        nb2 = 0
        if b2w:
            p1start = first_of_stage[[s for s, st in enumerate(stages) if st['pi'] == 1][0]]
            for k, g in enumerate(b2w): memq.append(dict(dl=100000 + k, av=-1, minslot=p1start + o.get('b2w_off', 0), grp=g, key=('b2', k)))
        state = dict(cur=-1, slot=-1)
        def eligible(m): return m['av'] <= state['cur'] and m.get('minslot', -1) <= state['slot']
        def pop_mem(force_key=None):
            best = None
            for m in memq:
                if force_key is not None:
                    if m['key'] == force_key: best = m; break
                elif eligible(m) and (best is None or m['dl'] < best['dl']): best = m
            if best is None: return False
            memq.remove(best)
            for x in best['grp']: self.b1_emit(x)
            return True
        def ensure(key):
            while any(m['key'] == key for m in memq):
                m = [m for m in memq if m['key'] == key][0]
                assert m['av'] <= state['cur'], (key, state)
                pop_mem(key)
        A(f"buffer_load_dwordx4 v[16:19], v7, {ws}, s42 offen{SC1}", tag='st')
        A(f"buffer_load_dwordx4 v[20:23], v7, {ws}, s42 offen offset:2048{SC1}", tag='st')
        for q in range(o.get('b1_xpre', 8)): ensure(('x', q))
        A("v_add_f32 v16, v16, v18"); A("v_add_f32 v17, v17, v19"); A("v_add_f32 v20, v20, v22"); A("v_add_f32 v21, v21, v23")
        A("v_add_f32 v16, v16, v20"); A("v_add_f32 v17, v17, v21")
        A("v_mov_b32 v18, v16"); A("v_mov_b32 v19, v17")
        A("v_permlane32_swap_b32 v16, v18"); A("v_permlane32_swap_b32 v17, v19")
        A("v_add_f32 v16, v16, v18"); A("v_add_f32 v17, v17, v19")
        A(f"v_mul_f32 v16, {f2u(1.0/640):#x}, v16"); A(f"v_mul_f32 v17, {f2u(1.0/640):#x}, v17")
        A(f"v_fma_f32 v17, -v16, v16, v17"); A(f"v_add_f32 v17, {f2u(1e-5):#x}, v17")
        A(f"v_sqrt_f32 v{vStd}, v17"); A(f"v_sub_f32 v{vNm}, 0, v16"); A(f"v_rcp_f32 v{vR1}, v{vStd}"); A(f"v_mul_f32 v{vR1}, {f2u(-LOG2E):#x}, v{vR1}")
        fillq = []
        def acc(pi, ti): return ACCB[pi][ti]
        def epilogue(pi, ti, t, idx):
            a = acc(pi, ti); L = []
            for i in range(4): L.append(f"ds_read_b128 v[{CSR+4*i}:{CSR+4*i+3}], v{vCS} offset:{t*128 + i*32}")
            for r in range(8): L.append(f"v_fma_f32 v{a+r}, v{vNm}, v{CSR+r}, v{a+r}")
            for r in range(8): L.append(f"v_mul_f32 v{a+r}, v{vR1}, v{a+r}")
            sal = [f"s_add_u32 s40, s24, {t}", "s_lshr_b32 s41, s40, 1", "s_lshl_b32 s41, s41, 12", "s_and_b32 s40, s40, 1",
                   "s_lshl_b32 s40, s40, 9", "s_add_u32 s40, s40, s41", "s_add_u32 s40, s40, s31"]
            for r in range(8):
                L.append(f"v_exp_f32 v{a+r}, v{a+r}"); L.append(f"v_fma_f32 v{a+8+r}, v{vNm}, v{CSR+8+r}, v{a+8+r}")
            L.append(f"v_fma_f32 v{a}, v{a}, v{vStd}, v{vStd}")
            for r in range(8):
                if r < 7: L.append(f"v_fma_f32 v{a+r+1}, v{a+r+1}, v{vStd}, v{vStd}")
                L.append(f"v_rcp_f32 v{a+r}, v{a+r}")
                if r < 7: L.append(sal[r])
            for r in range(8): L.append(f"v_mul_f32 v{a+8+r}, v{a+8+r}, v{a+r}")
            ot = OUT[idx % 2]
            for r in range(4): L.append(f"v_cvt_pk_bf16_f32 v{ot+r}, v{a+8+2*r}, v{a+8+2*r+1}")
            L.append((f"buffer_store_dwordx4 v[{ot}:{ot+3}], v{vHH}, {ws}, s40 offen{SC1}", f'hh{pi}'))
            return [(a, x) for x in L]
        def cost(x):
            t = x[0] if isinstance(x, tuple) else x
            return 8 if t.split()[0] in TRANS else 4
        def read_frag(f):
            s, addr, t, q = frags[f]; b = WB + 4 * (f % NB)
            if addr < 65536: A(f"ds_read_b128 v[{b}:{b+3}], v{vW} offset:{addr}", tag='wf')
            else: A(f"ds_read_b128 v[{b}:{b+3}], v14 offset:{addr-65536}", tag='wf')
        def enter_stage(s):
            ensure(('w', s))
            assert s in self.b1_wdone, s
            A.wait_vm([f"w{s}"])
            if s == 0: A.wait_ds()
            A("s_barrier")
            state['cur'] = s
            if s == 0: self.stamp('b1_first')
            if self.b1_hook: self.b1_hook(s, stages[s])
        cur = [-1]
        def pre_read(f):
            if f >= NF: return
            if frags[f][0] != cur[0]:
                cur[0] = frags[f][0]; enter_stage(cur[0])
            read_frag(f)
        for f in range(min(RA, NF)): pre_read(f)
        tidx = 0; credit = 1.0
        for f in range(NF):
            state['slot'] = f
            s, addr, t, q = frags[f]
            st = stages[s]; pi = st['pi']; ti = st['tiles'].index(t)
            a = acc(pi, ti); b = WB + 4 * (f % NB)
            if q == 0:
                while any(x[0] == a for x in fillq):
                    x = fillq.pop(0); self.b1_emit(x[1])
            ensure(('x', q))
            c = "0" if q == 0 else f"v[{a}:{a+15}]"
            A(f"v_mfma_f32_32x32x16_bf16 v[{a}:{a+15}], v[{b}:{b+3}], a[{4*q}:{4*q+3}], {c}")
            pre_read(f + RA)
            budget = o.get('b1_budget', 20)
            credit = min(credit + 1.0 / pace, 1.6)
            if credit >= 1.0 and pop_mem():
                credit -= 1.0; budget -= o.get('b1_memcost', 10)
            while fillq and budget > 0:
                x = fillq[0]
                cst = cost(x[1])
                if cst > budget + 3: break
                fillq.pop(0); self.b1_emit(x[1]); budget -= cst
                if isinstance(x[1], tuple): credit -= 1.0
            last_of_pass = (f + 1 == NF) or (stages[frags[f+1][0]]['pi'] != pi)
            if last_of_pass:
                self.stamp(f'b1_pass{pi}')
                for ti2, t2 in enumerate(st['tiles']):
                    fillq += epilogue(pi, ti2, t2, tidx); tidx += 1
        while fillq: self.b1_emit(fillq.pop(0)[1])
        state['slot'] = 10 ** 6
        self.b1_left = [m['grp'] for m in sorted(memq, key=lambda m: m['dl'])]
        assert all(m['key'][0] == 'b2' for m in memq)

    B2W_EARLY = [f"a[{160+4*k}:{163+4*k}]" for k in range(24)] + [f"v[{160+4*k}:{163+4*k}]" for k in range(10)] + \
                [f"v[{224+4*k}:{227+4*k}]" for k in range(3)] + [f"v[{16+4*k}:{19+4*k}]" for k in range(3)]
    B2W_LATE = [f"a[{4*k}:{4*k+3}]" for k in range(30)]
    B2H = [f"a[{120+4*k}:{123+4*k}]" for k in range(8)] + [f"v[{144+4*k}:{147+4*k}]" for k in range(4)] + \
          [f"v[{200+4*k}:{203+4*k}]" for k in range(6)] + [f"a[{152+4*k}:{155+4*k}]" for k in range(2)]
    def b2_wreg(self, ks, ct):
        i = ks * 5 + ct
        return self.B2W_EARLY[i] if i < 40 else self.B2W_LATE[i - 40]
    def b2_hreg(self, ks, u): return self.B2H[(ks % 5) * 4 + u]
    def B2_wbase(self):
        A = self.A; wave = sWAVE
        A(f"s_mul_i32 s46, {wave}, 14"); A(f"s_mul_i32 s45, {wave}, 13"); A("s_add_u32 s45, s45, 2")
        A(f"s_cmp_lt_u32 {wave}, 2"); A("s_cselect_b32 s46, s46, s45")
        A(f"s_mul_i32 s44, {sJ}, 54"); A("s_add_u32 s44, s44, s46"); A("s_mul_i32 s44, s44, 5120"); A(f"s_add_u32 s44, s44, {WDF}")
    def b2_wloads(self, ks):
        L = []
        for ct in range(5):
            pre = [f"s_add_u32 s45, s44, {ks*5120}"] if ct == 0 else ([f"s_add_u32 s45, s44, {ks*5120+4096}"] if ct == 4 else [])
            L.append(pre + [(f"buffer_load_dwordx4 {self.b2_wreg(ks, ct)}, v11, {SRD_WS}, s45 offen offset:{(ct % 4)*1024}{SC1}", f"bw{ks}")])
        return L
    def b2_wgroups(self, ks0, ks1):
        L = []
        for ks in range(ks0, ks1):
            for ct in range(5):
                L.append([f"s_add_u32 s45, s44, {ks*5120 + (4096 if ct == 4 else 0)}",
                          (f"buffer_load_dwordx4 {self.b2_wreg(ks, ct)}, v11, {SRD_WS}, s45 offen offset:{(ct % 4)*1024}{SC1}", f"bw{ks}")])
        return L
    def B2_pre(self, HH, left):
        A = self.A; wave = sWAVE; ws = SRD_WS; o = self.o
        self.tile_roles()
        A("v_and_b32 v1, 15, v0"); A("v_lshrrev_b32 v2, 4, v0")
        A("v_mul_u32_u24 v5, 163840, v1"); A(f"v_lshl_add_u32 v12, v2, 3, v5")
        A("s_lshl_b32 s30, s22, 1"); A("s_add_u32 s30, s30, s23"); A("s_mul_i32 s30, s30, 221184"); A("s_lshl_b32 s31, s46, 12"); A("s_add_u32 s30, s30, s31"); A(f"s_add_u32 s30, s30, {HH}")
        for u in range(4):
            A(f"s_add_u32 s31, {wave}, {u}"); A("s_and_b32 s31, s31, 3"); A("s_lshl_b32 s31, s31, 10"); A(f"s_add_u32 s{32+u}, s30, s31")
        A("s_lshl_b32 s43, s23, 2"); A(f"s_add_u32 s43, s43, {wave}")
        rest = list(left) + self.b2_wgroups(8, 14)
        nA = o.get('b2_preA', 5)
        self.emitl(rest[:nA])
        def partB(raw): self.emitl(rest[nA:], raw=raw)
        self.b2_partB = partB
    def b2_hloads(self, ks):
        return [[f"s_add_u32 s40, s{32+u}, {ks*4096}", f"buffer_load_dwordx4 {self.b2_hreg(ks,u)}, v11, {SRD_WS}, s40 offen{SC1}"] for u in range(4)]
    def B2_main(self, out_srd, out_off, aux):
        A = self.A; wave = sWAVE; ws = SRD_WS; o = self.o
        ACC = 64; NK = 14; NH = 5
        hiss = 0
        for ks in range(o.get('b2_hpre', 3)):
            self.emitl(self.b2_hloads(ks)); hiss = ks + 1
        skip = self.lab('b2skip')
        q = []
        for ks in range(NK):
            while hiss < NK and hiss < ks + NH and len(q) < o.get('b2_hq', 5): q += self.b2_hloads(hiss); hiss += 1
            assert hiss > ks
            if ks == NK - 1:
                while q: self.emitl([q.pop(0)])
                A(f"s_cmp_ge_u32 {wave}, 2"); A(f"s_cbranch_scc1 {skip}")
            cnt = 0
            for ct in range(5):
                for u in range(4):
                    a = ACC + (u * 5 + ct) * 4; c = "0" if ks == 0 else f"v[{a}:{a+3}]"
                    A(f"v_mfma_f32_16x16x32_bf16 v[{a}:{a+3}], {self.b2_wreg(ks, ct)}, {self.b2_hreg(ks, u)}, {c}")
                    cnt += 1
                    if q and cnt % o.get('b2_space', 4) == 0: self.emitl([q.pop(0)])
        A.label(skip)
        A("s_waitcnt vmcnt(0)")
        self.stamp('b2_loop')
        A("s_nop 7")
        A("v_lshlrev_b32 v10, 4, v0")
        for u in range(1, 4):
            A(f"s_add_u32 s31, {wave}, {u}"); A("s_and_b32 s31, s31, 3"); A("s_mul_i32 s31, s31, 15360"); A(f"s_add_u32 s31, s31, {(u-1)*5120}")
            A(f"v_add_u32 v13, s31, v10")
            for ct in range(5):
                a = ACC + (u * 5 + ct) * 4
                A(f"ds_write_b128 v13, v[{a}:{a+3}] offset:{ct*1024}")
        A("s_lshl_b32 s37, s43, 4"); A("s_add_u32 s37, s37, s22"); A("s_mul_i32 s37, s37, 1280"); A("s_mul_i32 s38, s24, 160"); A("s_add_u32 s37, s37, s38")
        if out_off: A(f"s_add_u32 s37, s37, {out_off}")
        A(f"s_mul_i32 s31, {wave}, 15360"); A(f"v_add_u32 v13, s31, v10")
        A.drain(vm=False); A("s_barrier")
        T = 144
        for ct in range(5):
            for rk in range(3):
                A(f"ds_read_b128 v[{T+(ct*3+rk)*4}:{T+(ct*3+rk)*4+3}], v13 offset:{rk*5120+ct*1024}")
        for ct in range(5):
            a = ACC + ct * 4
            for rk in range(3):
                for r in range(4): A(f"v_add_f32 v{a+r}, v{a+r}, v{T+(ct*3+rk)*4+r}")
            for p in range(2):
                rr = RES + 2 * ct + p
                A(f"v_lshlrev_b32 v14, 16, v{rr}"); A(f"v_and_b32 v15, 0xffff0000, v{rr}")
                A(f"v_add_f32 v{a+2*p}, v{a+2*p}, v14"); A(f"v_add_f32 v{a+2*p+1}, v{a+2*p+1}, v15")
                A(f"v_cvt_pk_bf16_f32 v{rr}, v{a+2*p}, v{a+2*p+1}")
            A(f"buffer_store_dwordx2 v[{RES+2*ct}:{RES+2*ct+1}], v12, {out_srd}, s37 offen offset:{ct*32}{aux}", tag='out')

    def build(self):
        A = self.A; wave = sWAVE; ws = SRD_WS
        self.entry()
        self.code_prefetch(self.o.get('code_bytes', 65536))
        A(f"s_lshl_b32 s61, {sWG}, 8"); A(f"s_add_u32 s61, s61, {SYNC}")
        self.one_lane(["v_mov_b32 v254, 0", "v_mov_b32 v255, 0", f"buffer_store_dword v254, v255, {ws}, s61 offen sc1"])
        PB = 3 * self.STG
        self.P_pre(PB)
        self.A1_setup(0)
        n0 = len(A.ins)
        for s in range(3):
            self.emitl(self.A1_dma_x(s, SRD_X, '')); self.emitl(self.A1_dma_w(s))
        A("v_mul_u32_u24 v5, 163840, v15"); A("v_lshl_add_u32 v13, v14, 3, v5")
        A(f"s_lshl_b32 s50, s23, 2"); A(f"s_add_u32 s50, s50, {wave}"); A("s_lshl_b32 s50, s50, 4"); A("s_add_u32 s50, s50, s22"); A("s_mul_i32 s50, s50, 1280"); A("s_mul_i32 s51, s24, 160"); A("s_add_u32 s50, s50, s51")
        for ct in range(5):
            A(f"buffer_load_dwordx2 v[{RES+2*ct}:{RES+2*ct+1}], v13, {SRD_X}, s50 offen offset:{ct*32}", tag='res')
        nyoung = sum(1 for i in A.ins[n0:] if i.kind in VM_KINDS)
        self.dft16_consts()
        self.stamp('p_wait')
        self.P_main(PB, nyoung)
        self.stamp('p_done')
        for layer in range(2):
            Z = (Z1, Z2)[layer]; XF = (X1F, X3F)[layer]; ST = (ST1, ST3)[layer]; HH = (HH1, HH2)[layer]
            if layer == 0: self.A1_main({0, 1, 2}, SRD_X, '', Z)
            else: self.A1_main({0, 1, 2, 3}, ws, SC1, Z)
            self.stamp(f'a1_end{layer}')
            A.drain(); A("s_waitcnt vmcnt(0)")
            self.stamp('.drained')
            A("s_barrier")
            if layer == 0:
                csrd, coff, roff, stride = SRD_DBG, 0, 128, 16
            else:
                csrd, coff, roff, stride = ws, line(L_AC), line(L_AR), 256
            A(f"s_mul_i32 s61, {sJ}, {stride}"); A(f"s_add_u32 s62, s61, {roff}")
            if coff: A(f"s_add_u32 s61, s61, {coff}")
            l = self.lab('rel')
            self.one_lane(["v_mov_b32 v254, 1", "v_mov_b32 v255, 0", f"buffer_atomic_add v254, v255, {csrd}, s61 offen sc0 sc1",
                           "s_waitcnt vmcnt(0)", "v_readfirstlane_b32 s63, v254", "s_nop 3", "s_cmp_lg_u32 s63, 31", f"s_cbranch_scc1 {l}",
                           "v_mov_b32 v254, 1", f"buffer_store_dword v254, v255, {csrd}, s62 offen sc1", f"{l}:"])
            self.A2_consts()
            self.A2_setup()
            A(f"s_lshl_b32 s50, {sJ}, 1"); A(f"s_sub_u32 s51, 14, s50")
            A(f"s_cmp_lt_u32 {sJ}, 4"); A("s_cselect_b32 s52, s50, s51")
            A("s_add_u32 s53, s52, 1")
            A("s_add_u32 s54, s52, 2"); A("s_and_b32 s54, s54, 7")
            A(f"s_cmp_lt_u32 {sJ}, 4"); A("s_cselect_b32 s54, s52, s54")
            lane_code = ["v_mov_b32 v255, s52", "v_mov_b32 v254, s53", "v_cmp_eq_u32 vcc, 1, v0", "s_nop 1", "v_cndmask_b32 v255, v255, v254, vcc",
                         "v_mov_b32 v254, s54", "v_cmp_eq_u32 vcc, 2, v0", "s_nop 1", "v_cndmask_b32 v255, v255, v254, vcc", f"v_mul_u32_u24 v255, {stride}, v255"]
            self.wait_ge(csrd, [f"s_mov_b32 s61, {roff}"], 1, lane_code=lane_code)
            self.stamp(f'sA_done{layer}')
            self.A2_main(Z, XF, ST)
            self.stamp(f'a2_end{layer}')
            self.arrive([f"s_lshl_b32 s61, {sC}, 8", f"s_add_u32 s61, s61, {line(L_B(layer))}"])
            self.B2_wbase()
            self.B1_pre(XF, ST, HH)
            self.wait_ge(ws, [f"s_lshl_b32 s61, {sC1}, 8", f"s_add_u32 s61, s61, {line(L_B(layer))}"], 16, partB=self.b1_partB)
            self.stamp(f'sB_done{layer}')
            self.b1_hook = None
            self.B1_main(b2w=self.b2_wgroups(0, 8))
            self.stamp(f'b1_end{layer}')
            self.arrive([f"s_lshl_b32 s61, {sC1}, 8", f"s_add_u32 s61, s61, {line(L_C(layer))}"])
            self.B2_pre(HH, self.b1_left)
            self.wait_ge(ws, [f"s_lshl_b32 s61, {sC}, 8", f"s_add_u32 s61, s61, {line(L_C(layer))}"], 16, partB=self.b2_partB)
            self.stamp(f'sC_done{layer}')
            if layer == 0:
                self.B2_main(ws, X2, SC1)
                self.stamp('b2_end0')
                self.arrive([f"s_lshl_b32 s61, {sC}, 1", f"s_add_u32 s61, s61, {sHALF}", "s_lshl_b32 s61, s61, 8", f"s_add_u32 s61, s61, {line(L_D)}"])
                self.A1_setup(X2)
                self.emitl(self.A1_dma_w(0))
                def pB(raw):
                    for s in range(1, 4): self.emitl(self.A1_dma_w(s), raw=raw)
                self.wait_ge(ws, [f"s_lshl_b32 s61, {sC}, 1", f"s_add_u32 s61, s61, {sHALF}", "s_lshl_b32 s61, s61, 8", f"s_add_u32 s61, s61, {line(L_D)}"], 8, partB=pB)
                self.stamp('sD_done')
                for s in range(4): self.emitl(self.A1_dma_x(s, ws, SC1))
            else:
                self.B2_main(SRD_OUT, 0, '')
                self.stamp('b2_end1')
        A.drain()
        self.stamp_flush()
        if self.o.get('dbgstamp'):
            A("s_waitcnt vmcnt(0)"); self.dbgstamp(1)
        A.label("L_exit")
        return A.text()

def header(launches):
    ref = open(f'cdna_kernels/{NAME}.s.ref').read().split('\n')
    hdr = []
    for l in ref:
        if l.startswith('; @launch'): continue
        if not l.startswith(';'): break
        hdr.append(l)
    for l in launches: hdr.append(l)
    return '\n'.join(hdr) + '\n.amdgcn_target "amdgcn-amd-amdhsa--gfx950"\n'
LDS_BYTES = 4 * 36864
def make(out, diag=False, name=NAME + '_kernel', **opt):
    m = Mega(diag=diag, **opt)
    body = m.build()
    txt = kernel_block(name, body, vgpr=512, sgpr=100, accum=256)
    if out:
        open(out, 'w').write(header([f"; @launch grid=(256,1,1) block=(256,1,1) lds={LDS_BYTES}"]) + txt)
    return txt, m
if __name__ == '__main__':
    make(f'cdna_kernels/{NAME}.s')
```

```python
import sys
import mega
from mega import *

L_P = 112
L_A0C, L_A0R = 120, 128

class Mega2(Mega):
    def entry(self):
        A = self.A
        A("s_cmp_ge_u32 s2, 256"); A("s_cbranch_scc1 L_exit")
        load_srd(A, 8, KA['x'], S*D*2); load_srd(A, 12, KA['hre'], D*D*2); load_srd(A, 16, KA['him'], D*D*2)
        load_srd(A, 4, KA['ws'], WS_USED)
        load_srd(A, 76, KA['wg'], D*F*2); load_srd(A, 80, KA['wu'], D*F*2); load_srd(A, 84, KA['wd'], D*F*2)
        load_srd(A, 88, KA['dbg'], 256); load_srd(A, 92, KA['out'], S*D*2)
        A("v_lshrrev_b32 v1, 6, v0"); A("v_and_b32 v0, 63, v0"); A(f"v_readfirstlane_b32 {sWAVE}, v1"); A(f"s_mov_b32 {sWG}, s2")
        self.code_prefetch(65536)
        A(f"s_and_b32 s25, {sWG}, 7"); A(f"s_lshr_b32 s26, {sWG}, 3")
        A(f"s_and_b32 {sC}, s25, 3"); A(f"s_lshl_b32 {sC}, {sC}, 2"); A("s_lshr_b32 s27, s26, 3"); A(f"s_add_u32 {sC}, {sC}, s27")
        A(f"s_lshr_b32 {sHALF}, s26, 2"); A(f"s_and_b32 {sHALF}, {sHALF}, 1")
        A(f"s_lshr_b32 {sJ}, s25, 2"); A(f"s_lshl_b32 {sJ}, {sJ}, 2"); A("s_and_b32 s27, s26, 3"); A(f"s_add_u32 {sJ}, {sJ}, s27")
        A(f"s_and_b32 {sC1}, s25, 1"); A(f"s_lshl_b32 {sC1}, {sC1}, 3"); A("s_lshr_b32 s27, s26, 2"); A(f"s_add_u32 {sC1}, {sC1}, s27")
        A(f"s_lshr_b32 {sI1}, s25, 1"); A(f"s_lshl_b32 {sI1}, {sI1}, 2"); A("s_and_b32 s27, s26, 3"); A(f"s_add_u32 {sI1}, {sI1}, s27")
        A(f"s_mul_i32 {sT0}, {sI1}, 7"); A(f"s_min_u32 {sT0}, {sT0}, 101")
    def entry_wait(self):
        A = self.A
        A("s_waitcnt lgkmcnt(0)")
        if self.diag:
            A("s_mov_b32 s96, s4"); A("s_mov_b32 s97, s5"); A("s_mov_b32 s98, 0x4000000"); A("s_mov_b32 s99, 0x20000")
        self.stamp('start')
        if self.o.get('dbgstamp'): self.dbgstamp(0)

    def P_pre(self, PB):
        A = self.A; wave = sWAVE; wg = sWG; R = dict(raw=True)
        wd = self.lab('pwd'); e1 = self.lab('pe1')
        A(f"s_cmp_ge_u32 {wg}, 135"); A(f"s_cbranch_scc1 {wd}")
        s_udiv(A, 's40', wg, 5, 256)
        A(f"s_mul_i32 s41, s40, 5"); A(f"s_sub_u32 s41, {wg}, s41")
        A("v_lshrrev_b32 v1, 3, v0"); A("v_and_b32 v2, 7, v0"); A("v_and_b32 v3, 2, v1")
        A("v_xor_b32 v4, v2, v3"); A("v_xor_b32 v5, 4, v4"); A("v_mul_u32_u24 v6, 3456, v1")
        A("v_lshl_add_u32 v4, v4, 4, v6"); A("v_lshl_add_u32 v5, v5, 4, v6")
        A(f"s_lshl_b32 s42, s41, 7"); A(f"s_lshl_b32 s43, {wave}, 5"); A("s_add_u32 s42, s42, s43")
        A("s_mul_i32 s42, s42, 3456"); A("s_lshl_b32 s43, s40, 7"); A("s_add_u32 s42, s42, s43")
        A(f"s_lshl_b32 s47, {wave}, 12"); A(f"s_add_u32 s47, s47, {PB}")
        for i in range(4):
            A(f"s_add_u32 m0, s47, {i*1024}"); A(f"s_add_u32 s45, s42, {i*8*3456}")
            A(f"buffer_load_dwordx4 v4, {SRD_WG}, s45 offen lds", **R)
            A(f"s_add_u32 m0, s47, {16384+i*1024}"); A("s_nop 0", **R)
            A(f"buffer_load_dwordx4 v5, {SRD_WU}, s45 offen lds", **R)
        A(f"s_branch {e1}")
        A.label(wd)
        A(f"s_sub_u32 s40, {wg}, 135"); A("s_sub_u32 s43, s40, 108"); A("s_cmp_ge_u32 s40, 108"); A("s_cselect_b32 s40, s43, s40")
        A("s_mul_i32 s42, s40, 20480")
        for i in range(8):
            if i < 5:
                A(f"s_mul_i32 s43, {wave}, 5"); A(f"s_add_u32 s43, s43, {i}"); A("s_lshl_b32 s47, s43, 6")
                A("v_add_u32 v1, s47, v0")
                v_udiv(A, 'v2', 'v1', 80, 1280)
                A("v_mul_u32_u24 v3, 80, v2"); A("v_sub_u32 v3, v1, v3")
                A("v_and_b32 v4, 3, v2"); A("v_bfe_u32 v5, v2, 3, 1"); A("v_lshl_or_b32 v4, v5, 2, v4")
                A("v_lshlrev_b32 v4, 1, v4"); A("v_xor_b32 v3, v3, v4")
                A("v_mul_u32_u24 v2, 1280, v2"); A(f"v_lshl_add_u32 v6, v3, 4, v2")
                A("s_lshl_b32 s47, s43, 10"); A(f"s_add_u32 m0, s47, {PB}"); A("s_nop 0", **R)
            A(f"buffer_load_dwordx4 v6, {SRD_WD}, s42 offen lds", **R)
        A.label(e1)
        A.phantom_vm('pdma', 8)
    def P_main(self, PB):
        A = self.A; wave = sWAVE; wg = sWG; ws = SRD_WS; R = dict(raw=True)
        wd = self.lab('pmwd'); done = self.lab('pmdone')
        A.wait_vm('pdma'); A("s_barrier")
        if self.o.get('finestamp'): self.stamp('f_pwait')
        A(f"s_cmp_ge_u32 {wg}, 135"); A(f"s_cbranch_scc1 {wd}")
        A("v_lshrrev_b32 v1, 4, v0"); A("v_and_b32 v2, 1, v1"); A("v_lshrrev_b32 v3, 1, v1"); A("v_bfe_u32 v6, v0, 2, 2"); A("v_and_b32 v7, 3, v0")
        A("v_lshl_add_u32 v8, v3, 3, v6"); A("v_lshlrev_b32 v8, 7, v8"); A("v_lshl_add_u32 v8, v2, 14, v8")
        A("v_and_b32 v9, 1, v7"); A(f"s_lshl_b32 s46, {wave}, 1"); A("v_add_u32 v9, s46, v9")
        A("v_and_b32 v10, 2, v6"); A("v_lshl_or_b32 v10, v2, 2, v10"); A("v_xor_b32 v9, v9, v10")
        A("v_lshl_add_u32 v8, v9, 4, v8"); A("v_lshrrev_b32 v7, 1, v7"); A("v_lshl_add_u32 v8, v7, 3, v8"); A(f"v_add_u32 v8, {PB}, v8")
        A(f"s_lshl_b32 s46, s40, 2"); A(f"s_add_u32 s46, s46, {wave}")
        A("s_mul_i32 s47, s46, 40"); A("s_lshl_b32 s48, s41, 3"); A("s_add_u32 s47, s47, s48"); A("s_lshl_b32 s47, s47, 10"); A(f"s_add_u32 s47, s47, {W1F}")
        A("v_lshlrev_b32 v11, 4, v0"); A("v_mov_b32 v12, 0"); A("s_mov_b32 s49, 0x3f803f80")
        for q in range(8):
            r = 64 + 4 * q
            A(f"ds_read_b64_tr_b16 v[{r}:{r+1}], v8 offset:{q*2048}", **R); A(f"ds_read_b64_tr_b16 v[{r+2}:{r+3}], v8 offset:{q*2048+512}", **R)
            if q == 3: A("s_waitcnt lgkmcnt(4)", **R)
        for q in range(8):
            r = 64 + 4 * q
            A(f"s_add_u32 s48, s47, {q*1024}")
            if q == 0: A("s_waitcnt lgkmcnt(8)", **R)
            if q == 4: A("s_waitcnt lgkmcnt(0)", **R)
            A(f"buffer_store_dwordx4 v[{r}:{r+3}], v11, {ws}, s48 offen{SC1}", **R)
            for j in range(4): A(f"v_dot2c_f32_bf16 v12, s49, v{r+j}")
        A("v_mov_b32 v13, v12"); A("v_permlane32_swap_b32 v12, v13"); A("v_add_f32 v12, v12, v13")
        A("s_mul_i32 s47, s41, 108"); A("s_add_u32 s47, s47, s46"); A("s_lshl_b32 s47, s47, 7"); A(f"s_add_u32 s47, s47, {CSP}")
        A("v_and_b32 v13, 31, v0"); A("v_lshlrev_b32 v13, 2, v13")
        A(f"buffer_store_dword v12, v13, {ws}, s47 offen{SC1}", **R)
        A(f"s_branch {done}")
        A.label(wd)
        A("v_lshrrev_b32 v1, 4, v0"); A("v_lshrrev_b32 v2, 1, v1"); A("v_and_b32 v3, 1, v1"); A("v_bfe_u32 v6, v0, 2, 2"); A("v_and_b32 v7, 3, v0")
        A("v_lshl_add_u32 v8, v3, 3, v6"); A("v_lshl_or_b32 v10, v3, 2, v6"); A("v_lshlrev_b32 v10, 1, v10"); A("v_mul_u32_u24 v8, 1280, v8"); A(f"v_add_u32 v8, {PB}, v8")
        A("s_and_b32 s46, s40, 1"); A("s_lshr_b32 s47, s40, 1")
        A("v_and_b32 v11, 31, v0"); A("s_lshl_b32 s48, s46, 5"); A("v_add_u32 v11, s48, v11"); A("v_lshlrev_b32 v11, 4, v11")
        for i in range(5):
            A(f"s_mul_i32 s48, {wave}, 10"); A(f"s_add_u32 s48, s48, {2*i}"); A("v_add_u32 v1, s48, v2")
            A("v_lshrrev_b32 v3, 1, v7"); A("v_lshl_add_u32 v3, v1, 1, v3"); A("v_xor_b32 v3, v3, v10"); A("v_lshl_add_u32 v3, v3, 4, v8")
            A("v_and_b32 v4, 1, v7"); A("v_lshl_add_u32 v3, v4, 3, v3")
            r = 64 + 4 * i
            A(f"ds_read_b64_tr_b16 v[{r}:{r+1}], v3", **R); A(f"ds_read_b64_tr_b16 v[{r+2}:{r+3}], v3 offset:{4*1280}", **R)
            v_udiv(A, 'v4', 'v1', 5, 40)
            A("v_mul_u32_u24 v5, 5, v4"); A("v_sub_u32 v5, v1, v5"); A("v_mul_u32_u24 v4, 270, v4"); A("v_add_u32 v4, v4, v5")
            A("s_mul_i32 s48, s47, 5"); A("v_add_u32 v4, s48, v4"); A(f"v_lshl_add_u32 v{90+i}, v4, 10, v11")
        A("s_waitcnt lgkmcnt(0)", **R)
        A(f"s_mov_b32 s48, {WDF}")
        for i in range(5):
            r = 64 + 4 * i
            A(f"buffer_store_dwordx4 v[{r}:{r+3}], v{90+i}, {ws}, s48 offen{SC1}", **R)
        A.label(done)

    def A2_consts(self):
        A = self.A; wave = sWAVE; t = 48
        A(f"v_and_b32 v{t}, 15, v0"); A(f"v_lshrrev_b32 v{t+1}, 4, v0")
        A(f"s_lshl_b32 s55, {sHALF}, 2"); A(f"s_add_u32 s55, s55, {wave}"); A("s_lshl_b32 s55, s55, 4"); A(f"s_add_u32 s55, s55, {sC}")
        A(f"v_lshl_add_u32 v{t}, v{t}, 7, s55")
        A(f"v_lshrrev_b32 v{t+2}, 1, v{t+1}"); A(f"v_and_b32 v{t+1}, 1, v{t+1}"); A(f"v_lshl_add_u32 v{t+1}, v{t+1}, 6, v{t+2}")
        A(f"s_cmp_lt_u32 {sJ}, 4"); A(f"s_mov_b32 s56, {f2u(1/2048):#x}"); A(f"s_cselect_b32 s56, s56, {f2u(-1/2048):#x}")
        A(f"v_cvt_f32_u32 v{t}, v{t}"); A(f"v_cvt_f32_u32 v{t+1}, v{t+1}"); A(f"v_mul_f32 v{t}, s56, v{t}")
        A(f"v_mul_f32 v{t+1}, v{t}, v{t+1}")
        A(f"v_add_f32 v{t+2}, v{t}, v{t}"); A(f"v_mul_f32 v{t}, {f2u(16.0):#x}, v{t}")
        for q in range(8):
            A(f"v_fract_f32 v{t+3}, v{t+1}")
            A(f"v_add_f32 v{t+4}, v{t+1}, v{t}"); A(f"v_add_f32 v{t+5}, v{t+4}, v{t}"); A(f"v_add_f32 v{t+6}, v{t+5}, v{t}")
            for i in range(1, 4): A(f"v_fract_f32 v{t+3+i}, v{t+3+i}")
            if q < 7: A(f"v_add_f32 v{t+1}, v{t+1}, v{t+2}")
            for i in range(4): A(f"v_cos_f32 v{t+7+i}, v{t+3+i}")
            for i in range(4): A(f"v_sin_f32 v{t+3+i}, v{t+3+i}")
            A(f"v_cvt_pk_bf16_f32 v{t+7}, v{t+7}, v{t+8}"); A(f"v_cvt_pk_bf16_f32 v{t+8}, v{t+9}, v{t+10}")
            A(f"v_cvt_pk_bf16_f32 v{t+3}, v{t+3}, v{t+4}"); A(f"v_cvt_pk_bf16_f32 v{t+4}, v{t+5}, v{t+6}")
            b = 128 + 4 * q
            A(f"v_accvgpr_write_b32 a{b}, v{t+7}"); A(f"v_accvgpr_write_b32 a{b+1}, v{t+8}")
            A(f"v_accvgpr_write_b32 a{b+2}, v{t+3}"); A(f"v_accvgpr_write_b32 a{b+3}, v{t+4}")

    def A1_tail(self, Z, vg, vm, PB, PP, PQ, ZV):
        A = self.A; wave = sWAVE; ws = SRD_WS; ACC = 64
        for ct in range(5):
            a = ACC + 4 * ct
            for r in range(4): A(f"v_mul_f32 v{a+r}, v{a+r}, v{48+r}")
            A(f"v_cvt_pk_bf16_f32 v{PB+2*ct}, v{a}, v{a+1}"); A(f"v_cvt_pk_bf16_f32 v{PB+2*ct+1}, v{a+2}, v{a+3}")
        for ct in range(5):
            b = PB + 2 * ct
            A(f"v_mfma_f32_16x16x16_bf16 v[{PP+4*ct}:{PP+4*ct+3}], v[{vC16}:{vC16+1}], v[{b}:{b+1}], 0")
            A(f"v_mfma_f32_16x16x16_bf16 v[{PQ+4*ct}:{PQ+4*ct+3}], v[{vS16}:{vS16+1}], v[{b}:{b+1}], 0")
        A("v_mov_b32 v5, 1.0"); A("v_mov_b32 v6, -1.0"); A(f"v_cmp_gt_u32 vcc, 8, v{vm}"); A("v_cndmask_b32 v5, v6, v5, vcc")
        A(f"v_and_b32 v3, 7, v{vm}"); A(f"v_lshrrev_b32 v4, 3, v{vm}")
        A("v_lshlrev_b32 v3, 4, v3"); A("v_lshl_add_u32 v3, v4, 3, v3")
        A(f"v_mul_u32_u24 v4, 2560, v{vg}"); A("v_add_u32 v3, v3, v4")
        A(f"s_lshl_b32 s33, {wave}, 1"); A("v_add_u32 v3, s33, v3"); A(f"v_add_u32 v3, {self.ZA}, v3")
        if self.ZA_bar: A("s_barrier")
        for ct in range(5):
            for r in range(4):
                A(f"v_fmac_f32_dpp v{PP+4*ct+r}, v{PQ+4*ct+r}, v5 row_ror:8 row_mask:0xf bank_mask:0xf")
            for p in range(2):
                z = ZV + 2 * ct + p
                A(f"v_cvt_pk_bf16_f32 v{z}, v{PP+4*ct+2*p}, v{PP+4*ct+2*p+1}")
                A(f"ds_write_b16 v3, v{z} offset:{(2*p)*640 + ct*128}")
                A(f"ds_write_b16_d16_hi v3, v{z} offset:{(2*p+1)*640 + ct*128}")
        A(f"s_lshl_b32 s33, {wave}, 6"); A("v_add_u32 v7, s33, v0")
        A(f"s_lshl_b32 s33, {sC}, 1"); A(f"s_add_u32 s33, s33, {sHALF}"); A("s_mul_i32 s33, s33, 320"); A(f"s_mul_i32 s35, {sJ}, 40"); A("s_add_u32 s33, s33, s35")
        A("s_lshl_b32 s33, s33, 4"); A(f"s_add_u32 s33, s33, {Z}")
        for u in range(3):
            A(f"v_add_u32 v8, {256*u}, v7")
            v_udiv(A, 'v9', 'v8', 40, 768)
            A("v_mul_u32_u24 v10, 40, v9"); A("v_sub_u32 v10, v8, v10")
            A(f"v_mul_u32_u24 v9, {32*5120}, v9"); A(f"v_lshl_add_u32 v{11+u}, v10, 4, v9")
            A(f"v_lshlrev_b32 v8, 4, v8"); A(f"v_add_u32 v{52+u}, {self.ZA}, v8")
        A.drain(vm=False); A("s_barrier")
        ZR = ZV + 10; ZR += (-ZR) % 2
        for u in range(3): A(f"ds_read_b128 v[{ZR+4*u}:{ZR+4*u+3}], v{52+u}")
        for u in range(2):
            A(f"buffer_store_dwordx4 v[{ZR+4*u}:{ZR+4*u+3}], v{11+u}, {ws}, s33 offen{SC1}", tag='z')
        l = self.lab('zs')
        A.drain(vm=False)
        A(f"s_cmp_ge_u32 {wave}, 2"); A(f"s_cbranch_scc1 {l}")
        A(f"buffer_store_dwordx4 v[{ZR+8}:{ZR+11}], v13, {ws}, s33 offen{SC1}", raw=True)
        A.label(l)

    def A1a_main(self, Z):
        A = self.A; R = 3
        ACC = 64; FA = 96; FB = 112; vSum, vSq = 44, 45
        A(f"v_mov_b32 v{vSum}, 0"); A(f"v_mov_b32 v{vSq}, 0"); A("s_mov_b32 s34, 0x3f803f80")
        def reads(k):
            s, qq = divmod(k, 4); slot = s % R; hi = 4 if slot >= 2 else 0; off = (slot % 2) * self.STG if slot < 2 else 0
            fa = FA + 4 * (k % 2); fb = FB + 20 * (k % 2)
            L = [f"ds_read_b128 v[{fa}:{fa+3}], v{24+hi+qq} offset:{off}"]
            for ct in range(5): L.append(f"ds_read_b128 v[{fb+4*ct}:{fb+4*ct+3}], v{32+hi+qq} offset:{off+ct*4096}")
            return L
        dq = []; issued = {0, 1, 2}
        def dx(s): return self.A1_dma_x3(s)
        def enter(s):
            A.wait_vm(f"a1s{s}"); A("s_barrier")
            for nx in range(5):
                if nx not in issued and nx <= s + R - 1:
                    dq.extend(self.A1_dma_x3(nx)); dq.extend(self.A1_dma_w3(nx)); issued.add(nx)
        enter(0)
        self.stamp('a1_first')
        for x in reads(0): A(x)
        for k in range(20):
            nk = k + 1
            if nk < 20:
                if nk % 4 == 0:
                    while dq: self.emitl([dq.pop(0)])
                    A.wait_ds(); enter(nk // 4)
                rl = reads(nk)
            else: rl = []
            fa = FA + 4 * (k % 2); fb = FB + 20 * (k % 2)
            for ct in range(5):
                a = ACC + 4 * ct; c = "0" if k == 0 else f"v[{a}:{a+3}]"
                A(f"v_mfma_f32_16x16x32_bf16 v[{a}:{a+3}], v[{fa}:{fa+3}], v[{fb+4*ct}:{fb+4*ct+3}], {c}")
                if rl: A(rl.pop(0))
                if ct < 4:
                    A(f"v_dot2c_f32_bf16 v{vSq}, v{fa+ct}, v{fa+ct}"); A(f"v_dot2c_f32_bf16 v{vSum}, s34, v{fa+ct}")
                if dq: self.emitl([dq.pop(0)])
            while rl: A(rl.pop(0))
        self.stamp('a1_loop')
        for v in (vSum, vSq):
            A(f"v_mov_b32 v3, v{v}"); A(f"v_permlane16_swap_b32 v{v}, v3"); A(f"v_add_f32 v{v}, v{v}, v3")
            A(f"v_mov_b32 v3, v{v}"); A(f"v_permlane32_swap_b32 v{v}, v3"); A(f"v_add_f32 v{v}, v{v}, v3")
        A(f"v_mul_f32 v{vSum}, {f2u(1/640):#x}, v{vSum}"); A(f"v_mul_f32 v{vSq}, {f2u(1/640):#x}, v{vSq}")
        A(f"v_fma_f32 v{vSq}, -v{vSum}, v{vSum}, v{vSq}"); A(f"v_add_f32 v{vSq}, {f2u(1e-5):#x}, v{vSq}")
        A(f"v_rsq_f32 v{vSq}, v{vSq}")
        A("v_lshlrev_b32 v3, 4, v14")
        for r in range(4):
            A(f"v_add_u32 v4, {4*r}, v3"); A(f"ds_bpermute_b32 v{48+r}, v4, v{vSq}")
        self.A1_tail(Z, 14, 15, 84, 160, 180, 200)
    def A1_dma_x3(self, s):
        slot = (s % 3) * self.STG
        return [[f"s_add_u32 m0, s31, {slot + i*1024}", f"s_add_u32 s33, s29, {i*4*163840 + s*256}",
                 (f"buffer_load_dwordx4 v{16+i}, {SRD_X}, s33 offen lds", f"a1s{s}")] for i in range(4)]
    def A1_dma_w3(self, s):
        slot = (s % 3) * self.STG
        return [[f"s_add_u32 m0, s32, {slot + ct*4096}", f"s_add_u32 s33, s30, {ct*8*1280 + s*256}",
                 (f"buffer_load_dwordx4 v{21 if ct == 0 else 20}, s[36:39], s33 offen lds", f"a1s{s}")] for ct in range(5)]

    def A1b_pre(self, first=False):
        A = self.A; wave = sWAVE
        A(f"s_mov_b32 s38, {D*D*2}"); A("s_mov_b32 s39, 0x20000")
        A("v_lshrrev_b32 v14, 4, v0"); A("v_and_b32 v15, 15, v0")
        A(f"s_lshl_b32 s28, {wave}, 2"); A("v_add_u32 v3, s28, v14"); A("v_xor_b32 v3, v15, v3")
        A("v_mul_u32_u24 v4, 1280, v14"); A(f"v_lshl_add_u32 v28, v3, 4, v4")
        A(f"s_or_b32 s29, {sJ}, {wave}"); A("s_cmp_eq_u32 s29, 0"); A(f"s_cselect_b32 s29, {320*1280}, 0")
        A("v_cmp_eq_u32 vcc, 0, v14"); A(f"v_mov_b32 v5, s29"); A(f"v_cndmask_b32 v5, 0, v5, vcc"); A(f"v_add_u32 v29, v28, v5")
        A(f"s_mul_i32 s30, {sJ}, 40"); A(f"s_and_b32 s31, {wave}, 1"); A("s_lshl_b32 s31, s31, 2"); A("s_add_u32 s30, s30, s31"); A("s_mul_i32 s30, s30, 1280")
        A(f"s_lshl_b32 s32, {wave}, 10")
        if first:
            A("v_mul_u32_u24 v4, 163840, v15"); A("v_lshl_add_u32 v10, v14, 4, v4")
            A(f"s_lshl_b32 s31, {sHALF}, 2"); A(f"s_add_u32 s31, s31, {wave}"); A("s_lshl_b32 s31, s31, 4"); A(f"s_add_u32 s31, s31, {sC}"); A("s_mul_i32 s29, s31, 1280")
        else:
            A(f"s_lshl_b32 s31, {sHALF}, 2"); A(f"s_add_u32 s31, s31, {wave}"); A("s_mul_i32 s29, s31, 20480"); A(f"s_mul_i32 s33, {sC}, 163840"); A("s_add_u32 s29, s29, s33"); A(f"s_add_u32 s29, s29, {X2}")
            A(f"s_lshl_b32 s31, s31, 8"); A(f"s_lshl_b32 s33, {sC}, 13"); A("s_add_u32 s31, s31, s33"); A(f"s_add_u32 s31, s31, {ST2}")
            A("v_lshlrev_b32 v10, 4, v0")
            A("v_lshlrev_b32 v11, 4, v15"); A("v_lshl_add_u32 v11, v14, 11, v11")
    def A1b_srd(self):
        A = self.A
        A(f"s_cmp_lt_u32 {sWAVE}, 2"); A(f"s_cselect_b32 s36, s12, s16"); A(f"s_cselect_b32 s37, s13, s17")
    def A1b_raddr(self):
        A = self.A
        for qq in range(4):
            A(f"v_add_u32 v3, {4*qq}, v14"); A("v_xor_b32 v3, v15, v3"); A("v_lshlrev_b32 v3, 4, v3"); A(f"v_lshl_add_u32 v{30+qq}, v15, 8, v3")
            A(f"v_add_u32 v{34+qq}, {3*20480}, v{30+qq}")
    def A1b_wdma(self, s):
        return [[f"s_add_u32 m0, s32, {s*20480 + ct*4096}", f"s_add_u32 s33, s30, {ct*8*1280 + s*256}",
                 (f"buffer_load_dwordx4 v{29 if ct == 0 else 28}, s[36:39], s33 offen lds", f"a1w{s}")] for ct in range(5)]
    def A1b_xload(self, q, first):
        if first:
            return [(f"buffer_load_dwordx4 a[{4*q}:{4*q+3}], v10, {SRD_X}, s29 offen offset:{q*64}", f"x{q}")]
        return [f"s_add_u32 s33, s29, {(q // 4) * 4096}", (f"buffer_load_dwordx4 a[{4*q}:{4*q+3}], v10, {SRD_WS}, s33 offen offset:{(q % 4) * 1024}{SC1}", f"x{q}")]
    def A1b_main(self, Z, first=False):
        A = self.A; ws = SRD_WS; ACC = 64; FB = 96
        if first:
            npre = 20
            for r in range(4): A(f"v_mov_b32 v{56+r}, 0x3f803f80")
        else:
            A(f"buffer_load_dwordx4 v[52:55], v11, {ws}, s31 offen{SC1}", tag='st2')
            npre = self.o.get('a1_xpre', 8)
            for q in range(npre): self.emitl([self.A1b_xload(q, False)])
        def reads(k):
            s, qq = divmod(k, 4); hi = 4 if s >= 3 else 0; off = (s - 3 if s >= 3 else s) * 20480
            fb = FB + 20 * (k % 2)
            return [f"ds_read_b128 v[{fb+4*ct}:{fb+4*ct+3}], v{30+hi+qq} offset:{off+ct*4096}" for ct in range(5)]
        def enter(s):
            if first or s == 0:
                A.wait_vm([f"a1w{s}"] if first else [f"a1w{k}" for k in range(5)]); A("s_barrier")
            if first and s == self.o.get('p_at', 4): self.P_pre(self.PB)
        enter(0)
        self.stamp('a1_first')
        for x in reads(0): A(x)
        xq = npre
        for k in range(20):
            if k < 19:
                if (k + 1) % 4 == 0: enter((k + 1) // 4)
                rl = reads(k + 1)
            else: rl = []
            fb = FB + 20 * (k % 2)
            for ct in range(5):
                a = ACC + 4 * ct; c = "0" if k == 0 else f"v[{a}:{a+3}]"
                A(f"v_mfma_f32_16x16x32_bf16 v[{a}:{a+3}], a[{4*k}:{4*k+3}], v[{fb+4*ct}:{fb+4*ct+3}], {c}")
                if rl: A(rl.pop(0))
                if ct == 2 and xq < 20: self.emitl([self.A1b_xload(xq, False)]); xq += 1
            if first:
                c1 = "0" if k == 0 else "v[84:87]"; c2 = "0" if k == 0 else "v[88:91]"
                A(f"v_mfma_f32_16x16x32_bf16 v[84:87], a[{4*k}:{4*k+3}], a[{4*k}:{4*k+3}], {c1}")
                A(f"v_mfma_f32_16x16x32_bf16 v[88:91], a[{4*k}:{4*k+3}], v[56:59], {c2}")
        self.stamp('a1_loop')
        if first:
            A("v_mul_u32_u24 v3, 80, v14")
            for r in range(4):
                A(f"v_add_u32 v4, {4*r}, v3"); A(f"ds_bpermute_b32 v{52+r}, v4, v{84+r}")
            for r in range(4):
                A(f"v_mul_f32 v{88+r}, {f2u(1/640):#x}, v{88+r}"); A(f"v_mul_f32 v{52+r}, {f2u(1/640):#x}, v{52+r}")
                A(f"v_fma_f32 v{52+r}, -v{88+r}, v{88+r}, v{52+r}"); A(f"v_add_f32 v{52+r}, {f2u(1e-5):#x}, v{52+r}")
                A(f"v_rsq_f32 v{48+r}, v{52+r}")
        else:
            A("v_add_f32 v52, v52, v54"); A("v_add_f32 v53, v53, v55")
            for v in (52, 53):
                A(f"v_mov_b32 v3, v{v}"); A(f"v_permlane16_swap_b32 v{v}, v3"); A(f"v_add_f32 v{v}, v{v}, v3")
                A(f"v_mov_b32 v3, v{v}"); A(f"v_permlane32_swap_b32 v{v}, v3"); A(f"v_add_f32 v{v}, v{v}, v3")
            A(f"v_mul_f32 v52, {f2u(1/640):#x}, v52"); A(f"v_mul_f32 v53, {f2u(1/640):#x}, v53")
            A(f"v_fma_f32 v53, -v52, v52, v53"); A(f"v_add_f32 v53, {f2u(1e-5):#x}, v53")
            A(f"v_rsq_f32 v53, v53")
            A("v_lshlrev_b32 v3, 4, v14")
            for r in range(4):
                A(f"v_add_u32 v4, {4*r}, v3"); A(f"ds_bpermute_b32 v{48+r}, v4, v53")
        self.A1_tail(Z, 14, 15, 140, 96, 116, 64)

    XW = 81920
    def A1c_pre(self):
        A = self.A; wave = sWAVE
        A(f"s_mov_b32 s38, {D*D*2}"); A("s_mov_b32 s39, 0x20000")
        A("v_lshrrev_b32 v14, 4, v0"); A("v_and_b32 v15, 15, v0")
        for i in range(4):
            A(f"v_add_u32 v3, {4*i}, v14"); A("v_xor_b32 v3, v15, v3")
            A(f"v_mul_u32_u24 v4, 163840, v14"); A(f"v_lshl_add_u32 v{16+i}, v3, 4, v4")
        A(f"s_lshl_b32 s28, {wave}, 2"); A("v_add_u32 v3, s28, v14"); A("v_xor_b32 v3, v15, v3")
        A("v_mul_u32_u24 v4, 1280, v14"); A(f"v_lshl_add_u32 v28, v3, 4, v4")
        A(f"s_or_b32 s29, {sJ}, {wave}"); A("s_cmp_eq_u32 s29, 0"); A(f"s_cselect_b32 s29, {320*1280}, 0")
        A("v_cmp_eq_u32 vcc, 0, v14"); A(f"v_mov_b32 v5, s29"); A(f"v_cndmask_b32 v5, 0, v5, vcc"); A(f"v_add_u32 v29, v28, v5")
        A(f"s_mul_i32 s30, {sJ}, 40"); A(f"s_and_b32 s31, {wave}, 1"); A("s_lshl_b32 s31, s31, 2"); A("s_add_u32 s30, s30, s31"); A("s_mul_i32 s30, s30, 1280")
        A(f"s_lshl_b32 s32, {wave}, 10"); A(f"s_add_u32 s32, s32, {self.XW}")
        A(f"s_lshl_b32 s29, {sHALF}, 2"); A(f"s_add_u32 s29, s29, {wave}"); A("s_lshl_b32 s29, s29, 4"); A(f"s_add_u32 s29, s29, {sC}"); A("s_mul_i32 s29, s29, 1280")
        A(f"s_lshl_b32 s31, {wave}, 12")
    def A1c_raddr(self):
        A = self.A
        for qq in range(4):
            A(f"v_add_u32 v3, {4*qq}, v14"); A("v_xor_b32 v3, v15, v3"); A("v_lshlrev_b32 v3, 4, v3"); A("v_lshl_add_u32 v3, v15, 8, v3")
            A(f"v_add_u32 v{20+qq}, s31, v3"); A(f"v_add_u32 v{24+qq}, 0x10000, v{20+qq}")
            A(f"v_add_u32 v{30+qq}, {self.XW}, v3")
    def warm_weights(self):
        A = self.A
        A(f"s_lshl_b32 s50, {sWG}, 2"); A(f"s_add_u32 s50, s50, {sWAVE}"); A("s_mul_i32 s50, s50, 2160")
        A("v_lshlrev_b32 v6, 4, v0"); A("v_add_u32 v6, s50, v6")
        k = 0
        for srd in (SRD_WG, SRD_WU, SRD_WD):
            for i in range(3):
                A(f"buffer_load_dwordx4 a[{160+4*k}:{163+4*k}], v6, {srd}, 0 offen offset:{min(i*1024, 2160-1024)}", tag='warm'); k += 1
    def init_issue(self):
        A = self.A
        A("v_and_b32 v236, 1, v0"); A("v_lshlrev_b32 v236, 7, v236"); A("v_bfe_u32 v3, v0, 1, 2"); A("v_lshl_add_u32 v236, v3, 4, v236")
        A(f"buffer_load_dword v237, v236, {SRD_DBG}, 0 offen sc1", tag='apoll')
    def init_check(self):
        A = self.A; l = self.lab('ic'); d = self.lab('icd')
        A("s_mov_b32 s62, 0"); A("v_cmp_gt_u32 vcc, 32, v237")
        A("s_nop 1", raw=True); A("s_cmp_eq_u64 vcc, 0", raw=True); A(f"s_cbranch_scc1 {d}")
        A.label(l)
        A(f"buffer_load_dword v237, v236, {SRD_DBG}, 0 offen sc1", raw=True); A("s_waitcnt vmcnt(0)", raw=True)
        A("v_cmp_gt_u32 vcc, 32, v237", raw=True); A("s_add_u32 s62, s62, 1"); A("s_nop 1", raw=True)
        A("s_cmp_eq_u64 vcc, 0", raw=True); A(f"s_cbranch_scc1 {d}")
        A(f"s_cmp_lt_u32 s62, {SPIN_MAX}"); A(f"s_cbranch_scc1 {l}")
        A.label(d)
    def res_from_lds(self):
        A = self.A
        A(f"s_mul_i32 s50, {sJ}, 160"); A("v_lshl_add_u32 v3, v14, 3, s50")
        for ct in range(5):
            if ct: A("v_add_u32 v3, 32, v3")
            A("v_lshrrev_b32 v4, 8, v3"); A("v_bfe_u32 v5, v3, 4, 4"); A("v_xor_b32 v5, v5, v15")
            A("v_lshlrev_b32 v4, 14, v4"); A("v_lshl_add_u32 v4, v5, 4, v4"); A("v_and_b32 v5, 8, v3"); A("v_add_u32 v4, v4, v5")
            A("v_lshl_add_u32 v4, v15, 8, v4"); A("v_add_u32 v4, s31, v4")
            A(f"ds_read_b64 v[{RES+2*ct}:{RES+2*ct+1}], v4")
    def A1c_xdma(self, s):
        return [[f"s_add_u32 m0, s31, {s*16384 + i*1024}", f"s_add_u32 s33, s29, {i*4*163840 + s*256}",
                 (f"buffer_load_dwordx4 v{16+i}, {SRD_X}, s33 offen lds", f"a1x{s}")] for i in range(4)]
    def A1c_wdma(self, s):
        return [[f"s_add_u32 m0, s32, {(s % self.WR)*20480 + ct*4096}", f"s_add_u32 s33, s30, {ct*8*1280 + s*256}",
                 (f"buffer_load_dwordx4 v{29 if ct == 0 else 28}, s[36:39], s33 offen lds", f"a1w{s}")] for ct in range(5)]
    def A1c_main(self, Z):
        A = self.A; ACC = 64; FA = 92; FB = 100
        for r in range(4): A(f"v_mov_b32 v{56+r}, 0x3f803f80")
        def reads(k):
            s, qq = divmod(k, 4)
            fa = FA + 4 * (k % 2); fb = FB + 20 * (k % 2)
            xa = f"v{20+qq} offset:{s*16384}" if s < 4 else f"v{24+qq}"
            L = [f"ds_read_b128 v[{fa}:{fa+3}], {xa}"]
            for ct in range(5): L.append(f"ds_read_b128 v[{fb+4*ct}:{fb+4*ct+3}], v{30+qq} offset:{(s % self.WR)*20480 + ct*4096}")
            return L
        dq = []
        def enter(s):
            A.wait_vm([f"a1w{s}", f"a1x{s}"]); A("s_barrier")
            if s == 0:
                A(f"s_and_b32 s61, {sWG}, 1"); A("s_lshl_b32 s61, s61, 7"); A(f"s_bfe_u32 s62, {sWG}, 0x20001"); A("s_lshl_b32 s62, s62, 4"); A("s_add_u32 s61, s61, s62")
                self.one_lane(["v_mov_b32 v254, 1", "v_mov_b32 v255, 0", f"buffer_atomic_add v254, v255, {SRD_DBG}, s61 offen sc1"])
            if s == 3: self.init_issue()
            if self.o.get('warm', True) and s == self.o.get('warm_at', 3): self.warm_weights()
            if s >= 1 and self.o.get('finestamp'): self.stamp(f'ent{s}')
            if s >= 1 and s + self.WR - 1 < 5: dq.extend(self.A1c_wdma(s + self.WR - 1))
        enter(0)
        self.stamp('a1_first')
        for x in reads(0): A(x)
        for k in range(20):
            if k < 19:
                if (k + 1) % 4 == 0:
                    while dq: self.emitl([dq.pop(0)])
                    A.wait_ds(); enter((k + 1) // 4)
                rl = reads(k + 1)
            else: rl = []
            fa = FA + 4 * (k % 2); fb = FB + 20 * (k % 2)
            for ct in range(5):
                a = ACC + 4 * ct; c = "0" if k == 0 else f"v[{a}:{a+3}]"
                A(f"v_mfma_f32_16x16x32_bf16 v[{a}:{a+3}], v[{fa}:{fa+3}], v[{fb+4*ct}:{fb+4*ct+3}], {c}")
                if rl: A(rl.pop(0))
                if dq: self.emitl([dq.pop(0)])
            c1 = "0" if k == 0 else "v[84:87]"; c2 = "0" if k == 0 else "v[88:91]"
            A(f"v_mfma_f32_16x16x32_bf16 v[84:87], v[{fa}:{fa+3}], v[{fa}:{fa+3}], {c1}")
            if rl: A(rl.pop(0))
            A(f"v_mfma_f32_16x16x32_bf16 v[88:91], v[{fa}:{fa+3}], v[56:59], {c2}")
            while rl: A(rl.pop(0))
        self.stamp('a1_loop')
        self.res_from_lds()
        self.init_check()
        if self.o.get('p_at', 6) == 5:
            A("s_barrier")
            self.P_pre(self.PB)
        A("v_mul_u32_u24 v3, 80, v14")
        for r in range(4):
            A(f"v_add_u32 v4, {4*r}, v3"); A(f"ds_bpermute_b32 v{52+r}, v4, v{84+r}")
        for r in range(4):
            A(f"v_mul_f32 v{88+r}, {f2u(1/640):#x}, v{88+r}"); A(f"v_mul_f32 v{52+r}, {f2u(1/640):#x}, v{52+r}")
            A(f"v_fma_f32 v{52+r}, -v{88+r}, v{88+r}, v{52+r}"); A(f"v_add_f32 v{52+r}, {f2u(1e-5):#x}, v{52+r}")
            A(f"v_rsq_f32 v{48+r}, v{52+r}")
        self.A1_tail(Z, 14, 15, 140, 96, 116, 64)

    def tile_out_frag(self, XF, ST, vn, vg):
        A = self.A; wave = sWAVE; ws = SRD_WS; ACC = 64
        A(f"v_lshrrev_b32 v3, 1, v{vg}"); A(f"v_and_b32 v4, 1, v{vg}"); A(f"v_lshlrev_b32 v5, 4, v{vn}"); A("v_lshl_add_u32 v5, v3, 8, v5"); A("v_lshl_add_u32 v13, v4, 3, v5")
        A(f"s_lshl_b32 s38, {sHALF}, 2"); A(f"s_add_u32 s38, s38, {wave}")
        A(f"s_mul_i32 s36, {sC}, 163840"); A("s_mul_i32 s37, s38, 20480"); A("s_add_u32 s36, s36, s37"); A(f"s_mul_i32 s37, {sJ}, 2560"); A("s_add_u32 s36, s36, s37"); A(f"s_add_u32 s36, s36, {XF}")
        A("v_mov_b32 v48, 0"); A("v_mov_b32 v49, 0")
        for ct in range(5):
            a = ACC + 4 * ct
            for p in range(2):
                rr = RES + 2 * ct + p
                A(f"v_lshlrev_b32 v14, 16, v{rr}"); A(f"v_and_b32 v15, 0xffff0000, v{rr}")
                A(f"v_add_f32 v{a+2*p}, v{a+2*p}, v14"); A(f"v_add_f32 v{a+2*p+1}, v{a+2*p+1}, v15")
                A(f"v_cvt_pk_bf16_f32 v{rr}, v{a+2*p}, v{a+2*p+1}")
            A(f"buffer_store_dwordx2 v[{RES+2*ct}:{RES+2*ct+1}], v13, {ws}, s36 offen offset:{ct*512}{SC1}", tag='xf')
        for ct in range(5):
            a = ACC + 4 * ct
            for r in range(4):
                A(f"v_add_f32 v48, v48, v{a+r}"); A(f"v_fmac_f32 v49, v{a+r}, v{a+r}")
        for v in (48, 49):
            A(f"v_mov_b32 v3, v{v}"); A(f"v_permlane16_swap_b32 v{v}, v3"); A(f"v_add_f32 v{v}, v{v}, v3")
            A(f"v_mov_b32 v3, v{v}"); A(f"v_permlane32_swap_b32 v{v}, v3"); A(f"v_add_f32 v{v}, v{v}, v3")
        A(f"s_lshl_b32 s36, {sC}, 13"); A(f"s_lshr_b32 s37, {sJ}, 1"); A("s_lshl_b32 s37, s37, 11"); A("s_add_u32 s36, s36, s37")
        A("s_lshl_b32 s37, s38, 8"); A("s_add_u32 s36, s36, s37"); A(f"s_and_b32 s37, {sJ}, 1"); A("s_lshl_b32 s37, s37, 3"); A("s_add_u32 s36, s36, s37"); A(f"s_add_u32 s36, s36, {ST}")
        A(f"v_lshlrev_b32 v5, 4, v{vn}")
        A(f"buffer_store_dwordx2 v[48:49], v5, {ws}, s36 offen{SC1}", tag='st')

    def A2_main(self, Z, XF, ST, after_z=None, before_out=None):
        A = self.A; wave = sWAVE; ws = SRD_WS
        ACC = 64; FA = 96
        A(f"s_add_u32 s34, s34, {Z}")
        for qq in range(2):
            for ct in range(5):
                A(f"s_mul_i32 s36, s31, {ct}"); A("s_add_u32 s36, s36, s34")
                if qq: A(f"s_add_u32 s36, s36, {4*5120}")
                A(f"s_add_u32 m0, s35, {(qq*5+ct)*1024}")
                A(f"buffer_load_dwordx4 v{11 if ct == 0 else 10}, {ws}, s36 offen{SC1} lds", tag='z2')
        A.wait_vm('z2'); A("s_barrier")
        if after_z: after_z()
        self.stamp('a2_z')
        def reads(q):
            return [f"ds_read_b128 v[{FA+20*(q%2)+4*ct}:{FA+20*(q%2)+4*ct+3}], v12 offset:{(q*5+ct)*1024}" for ct in range(5)]
        for x in reads(0): A(x)
        for q in range(8):
            rl = reads(q + 1) if q < 7 else []
            for ct in range(5):
                a = ACC + 4 * ct; c = "0" if q == 0 else f"v[{a}:{a+3}]"; f = FA + 20 * (q % 2) + 4 * ct
                A(f"v_mfma_f32_16x16x32_bf16 v[{a}:{a+3}], v[{f}:{f+3}], a[{128+4*q}:{128+4*q+3}], {c}")
                if rl: A(rl.pop(0))
        if before_out: before_out()
        A(f"s_cmp_eq_u32 {sJ}, 0"); A("s_cselect_b32 s40, 0, 1")
        A("v_mov_b32 v6, 0"); A("v_or_b32 v5, s40, v2"); A("v_cmp_eq_u32 vcc, 0, v5"); A(f"v_cndmask_b32 v{ACC}, v{ACC}, v6, vcc")
        self.tile_out_frag(XF, ST, 1, 2)

    def B1_pre(self, XF, ST, HH, wait_p=None):
        A = self.A; wave = sWAVE; ws = SRD_WS; o = self.o
        R = o['b1_R']; CSL = R * 16384; self.CSL = CSL
        vX, vW, vHH, vCS = 10, 11, 12, 13
        A(f"s_mov_b32 s22, {sC1}"); A(f"s_mov_b32 s23, {sI1}"); A(f"s_mov_b32 s24, {sT0}")
        A(f"v_lshlrev_b32 v{vW}, 4, v0")
        A(f"s_mul_i32 s30, s24, 40960"); A(f"s_lshl_b32 s29, {wave}, 10"); A("s_add_u32 s30, s30, s29"); A(f"s_add_u32 s30, s30, {W1F}")
        for P in (1, 2, 3, 4): A(f"s_mul_i32 s{32+P}, {wave}, {P*1024}")
        stages = []
        for pi, tiles in enumerate(o['b1_passes']):
            P = len(tiles); KS = 4 if P >= 3 else 8
            for q0 in range(0, 40, KS): stages.append(dict(P=P, tiles=tiles, q0=q0, KS=KS, pi=pi))
        self.b1_stages = stages; self.b1_wdone = set(); self.b1_wcnt = {}
        if wait_p: wait_p()
        npre = min(o['b1_pre'], R - 2); nA = min(o.get('b1_preA', 2), npre)
        for s in range(nA): self.b1_emitl(self.b1_dma_stage(s))
        A("v_and_b32 v1, 31, v0"); A("v_lshrrev_b32 v2, 5, v0"); A("v_lshrrev_b32 v3, 4, v1"); A("v_and_b32 v4, 15, v0")
        A("v_lshlrev_b32 v5, 4, v4"); A(f"v_lshl_add_u32 v5, v2, 8, v5")
        A(f"v_mul_u32_u24 v6, 20480, v3"); A(f"v_add_u32 v{vX}, v6, v5")
        A(f"v_lshl_add_u32 v{vHH}, v3, 10, v5")
        A(f"v_lshlrev_b32 v{vCS}, 4, v2"); A(f"v_add_u32 v{vCS}, {CSL}, v{vCS}"); A(f"v_add_u32 v14, 0x10000, v{vW}")
        A(f"s_mul_i32 s28, s22, 163840"); A(f"s_mul_i32 s29, {wave}, 40960"); A("s_add_u32 s28, s28, s29"); A(f"s_add_u32 s28, s28, {XF}")
        A(f"s_mul_i32 s31, s22, 442368"); A(f"s_lshr_b32 s29, {wave}, 1"); A("s_mul_i32 s29, s29, 221184"); A("s_add_u32 s31, s31, s29")
        A(f"s_and_b32 s29, {wave}, 1"); A("s_lshl_b32 s29, s29, 11"); A("s_add_u32 s31, s31, s29"); A(f"s_add_u32 s31, s31, {HH}")
        A(f"v_lshlrev_b32 v7, 4, v1"); A(f"v_lshl_add_u32 v7, v2, 12, v7")
        A(f"s_lshl_b32 s42, s22, 13"); A(f"s_lshl_b32 s37, {wave}, 9"); A("s_add_u32 s42, s42, s37"); A(f"s_add_u32 s42, s42, {ST}")
        A(f"s_lshl_b32 s37, {wave}, 8"); A("v_lshlrev_b32 v8, 2, v0"); A("v_add_u32 v8, s37, v8")
        A(f"s_lshl_b32 s29, s24, 7"); A(f"s_add_u32 s29, s29, {CSP}")
        for k in range(5):
            A(f"buffer_load_dword v{59+k}, v8, {ws}, s29 offen{SC1}", tag='csp')
            if k < 4: A(f"s_add_u32 s29, s29, {108*128}")
        def partB(raw):
            for s in range(nA, npre):
                if raw: self.emitl(self.b1_dma_stage(s), raw=True)
                else: self.b1_emitl(self.b1_dma_stage(s))
        self.b1_partB = partB
        self.b1_npre = npre
    def B1_cs(self):
        A = self.A
        A("v_add_f32 v59, v59, v60"); A("v_add_f32 v61, v61, v62"); A("v_add_f32 v59, v59, v63"); A("v_add_f32 v59, v59, v61")
        A(f"v_add_u32 v8, {self.CSL}, v8"); A("ds_write_b32 v8, v59")

    def B1_main(self, b2w=None):
        A = self.A; ws = SRD_WS; o = self.o
        R = o['b1_R']; RA = o['b1_RA']; CSL = self.CSL; stages = self.b1_stages; NSTG = len(stages)
        WB = 32; NB = RA + 1; vNm, vStd, vR1 = 56, 57, 58
        ACCB = o.get('b1_acc', [[64, 80, 96, 112], [128, 144], [64]])
        vX, vW, vHH, vCS = 10, 11, 12, 13; CSR = 200; OUT = [216, 220]
        LAT = o.get('b1_lat', 28); pace = o.get('b1_pace', 2.1)
        self.b1_xdone = set()
        frags = []
        for s, st in enumerate(stages):
            slot = (s % R) * 16384
            for qq in range(st['KS']):
                for ti, t in enumerate(st['tiles']):
                    frags.append((s, slot + (qq * st['P'] + ti) * 1024, t, st['q0'] + qq))
        NF = len(frags)
        first_of_stage = {}; first_of_q = {}
        for f, (s, addr, t, q) in enumerate(frags):
            first_of_stage.setdefault(s, f); first_of_q.setdefault(q, f)
        memq = []
        lastx = [None]
        def xload(q):
            g = []
            g.append(f"s_add_u32 s39, s28, {(q // 8) * 4096}")
            g.append((f"buffer_load_dwordx4 a[{4*q}:{4*q+3}], v{vX}, {ws}, s39 offen offset:{(q % 8) * 512}{SC1}", f"x{q}"))
            return g
        for q in range(40): memq.append(dict(dl=first_of_q[q] - LAT, av=-1, grp=xload(q), key=('x', q)))
        for s in range(self.b1_npre, NSTG):
            for d in self.b1_dma_stage(s):
                memq.append(dict(dl=first_of_stage[s] - RA - LAT, av=s - (R - 2), grp=d, key=('w', s)))
        nb2 = 0
        if b2w:
            p1start = first_of_stage[[s for s, st in enumerate(stages) if st['pi'] == 1][0]]
            for k, g in enumerate(b2w): memq.append(dict(dl=100000 + k, av=-1, minslot=p1start + o.get('b2w_off', 0), grp=g, key=('b2', k)))
        state = dict(cur=-1, slot=-1)
        def eligible(m): return m['av'] <= state['cur'] and m.get('minslot', -1) <= state['slot']
        def pop_mem(force_key=None):
            best = None
            for m in memq:
                if force_key is not None:
                    if m['key'] == force_key: best = m; break
                elif eligible(m) and (best is None or m['dl'] < best['dl']): best = m
            if best is None: return False
            memq.remove(best)
            for x in best['grp']: self.b1_emit(x)
            return True
        def ensure(key):
            while any(m['key'] == key for m in memq):
                m = [m for m in memq if m['key'] == key][0]
                assert m['av'] <= state['cur'], (key, state)
                pop_mem(key)
        A(f"buffer_load_dwordx4 v[48:51], v7, {ws}, s42 offen{SC1}", tag='st')
        A(f"buffer_load_dwordx4 v[52:55], v7, {ws}, s42 offen offset:2048{SC1}", tag='st')
        for q in range(o.get('b1_xpre', 8)): ensure(('x', q))
        self.B1_cs()
        A("v_add_f32 v48, v48, v50"); A("v_add_f32 v49, v49, v51"); A("v_add_f32 v52, v52, v54"); A("v_add_f32 v53, v53, v55")
        A("v_add_f32 v48, v48, v52"); A("v_add_f32 v49, v49, v53")
        A("v_mov_b32 v50, v48"); A("v_mov_b32 v51, v49")
        A("v_permlane32_swap_b32 v48, v50"); A("v_permlane32_swap_b32 v49, v51")
        A("v_add_f32 v48, v48, v50"); A("v_add_f32 v49, v49, v51")
        A(f"v_mul_f32 v48, {f2u(1.0/640):#x}, v48"); A(f"v_mul_f32 v49, {f2u(1.0/640):#x}, v49")
        A(f"v_fma_f32 v49, -v48, v48, v49"); A(f"v_add_f32 v49, {f2u(1e-5):#x}, v49")
        A(f"v_sqrt_f32 v{vStd}, v49"); A(f"v_sub_f32 v{vNm}, 0, v48"); A(f"v_rcp_f32 v{vR1}, v{vStd}"); A(f"v_mul_f32 v{vR1}, {f2u(-LOG2E):#x}, v{vR1}")
        fillq = []
        def acc(pi, ti): return ACCB[pi][ti]
        def epilogue(pi, ti, t, idx):
            a = acc(pi, ti); L = []
            for i in range(4): L.append(f"ds_read_b128 v[{CSR+4*i}:{CSR+4*i+3}], v{vCS} offset:{t*128 + i*32}")
            for r in range(8): L.append(f"v_fma_f32 v{a+r}, v{vNm}, v{CSR+r}, v{a+r}")
            for r in range(8): L.append(f"v_mul_f32 v{a+r}, v{vR1}, v{a+r}")
            sal = [f"s_add_u32 s40, s24, {t}", "s_lshr_b32 s41, s40, 1", "s_lshl_b32 s41, s41, 12", "s_and_b32 s40, s40, 1",
                   "s_lshl_b32 s40, s40, 9", "s_add_u32 s40, s40, s41", "s_add_u32 s40, s40, s31"]
            for r in range(8):
                L.append(f"v_exp_f32 v{a+r}, v{a+r}"); L.append(f"v_fma_f32 v{a+8+r}, v{vNm}, v{CSR+8+r}, v{a+8+r}")
            L.append(f"v_fma_f32 v{a}, v{a}, v{vStd}, v{vStd}")
            for r in range(8):
                if r < 7: L.append(f"v_fma_f32 v{a+r+1}, v{a+r+1}, v{vStd}, v{vStd}")
                L.append(f"v_rcp_f32 v{a+r}, v{a+r}")
                if r < 7: L.append(sal[r])
            for r in range(8): L.append(f"v_mul_f32 v{a+8+r}, v{a+8+r}, v{a+r}")
            ot = OUT[idx % 2]
            for r in range(4): L.append(f"v_cvt_pk_bf16_f32 v{ot+r}, v{a+8+2*r}, v{a+8+2*r+1}")
            L.append((f"buffer_store_dwordx4 v[{ot}:{ot+3}], v{vHH}, {ws}, s40 offen{SC1}", f'hh{pi}'))
            return [(a, x) for x in L]
        def cost(x):
            t = x[0] if isinstance(x, tuple) else x
            return 8 if t.split()[0] in TRANS else 4
        def read_frag(f):
            s, addr, t, q = frags[f]; b = WB + 4 * (f % NB)
            if addr < 65536: A(f"ds_read_b128 v[{b}:{b+3}], v{vW} offset:{addr}", tag='wf')
            else: A(f"ds_read_b128 v[{b}:{b+3}], v14 offset:{addr-65536}", tag='wf')
        def enter_stage(s):
            ensure(('w', s))
            assert s in self.b1_wdone, s
            A.wait_vm([f"w{s}"])
            if s == 0: A.wait_ds()
            A("s_barrier")
            state['cur'] = s
            if s == 0: self.stamp('b1_first')
            if self.b1_hook: self.b1_hook(s, stages[s])
        cur = [-1]
        def pre_read(f):
            if f >= NF: return
            if frags[f][0] != cur[0]:
                cur[0] = frags[f][0]; enter_stage(cur[0])
            read_frag(f)
        for f in range(min(RA, NF)): pre_read(f)
        tidx = 0; credit = 1.0
        for f in range(NF):
            state['slot'] = f
            s, addr, t, q = frags[f]
            st = stages[s]; pi = st['pi']; ti = st['tiles'].index(t)
            a = acc(pi, ti); b = WB + 4 * (f % NB)
            if q == 0:
                while any(x[0] == a for x in fillq):
                    x = fillq.pop(0); self.b1_emit(x[1])
            ensure(('x', q))
            c = "0" if q == 0 else f"v[{a}:{a+15}]"
            A(f"v_mfma_f32_32x32x16_bf16 v[{a}:{a+15}], v[{b}:{b+3}], a[{4*q}:{4*q+3}], {c}")
            pre_read(f + RA)
            budget = o.get('b1_budget', 20)
            credit = min(credit + 1.0 / pace, 1.6)
            if credit >= 1.0 and pop_mem():
                credit -= 1.0; budget -= o.get('b1_memcost', 10)
            while fillq and budget > 0:
                x = fillq[0]
                cst = cost(x[1])
                if cst > budget + 3: break
                fillq.pop(0); self.b1_emit(x[1]); budget -= cst
                if isinstance(x[1], tuple): credit -= 1.0
            last_of_pass = (f + 1 == NF) or (stages[frags[f+1][0]]['pi'] != pi)
            if last_of_pass:
                self.stamp(f'b1_pass{pi}')
                for ti2, t2 in enumerate(st['tiles']):
                    fillq += epilogue(pi, ti2, t2, tidx); tidx += 1
        while fillq: self.b1_emit(fillq.pop(0)[1])
        state['slot'] = 10 ** 6
        self.b1_left = [m['grp'] for m in sorted(memq, key=lambda m: m['dl'])]
        assert all(m['key'][0] == 'b2' for m in memq)


    def B2_main(self, final):
        A = self.A; wave = sWAVE; ws = SRD_WS; o = self.o
        ACC = 64; NK = 14; NH = 5
        hiss = 0
        for ks in range(o.get('b2_hpre', 3)):
            self.emitl(self.b2_hloads(ks)); hiss = ks + 1
        skip = self.lab('b2skip')
        q = []
        for ks in range(NK):
            while hiss < NK and hiss < ks + NH and len(q) < o.get('b2_hq', 5): q += self.b2_hloads(hiss); hiss += 1
            assert hiss > ks
            if ks == NK - 1:
                while q: self.emitl([q.pop(0)])
                A(f"s_cmp_ge_u32 {wave}, 2"); A(f"s_cbranch_scc1 {skip}")
            cnt = 0
            for ct in range(5):
                for u in range(4):
                    a = ACC + (u * 5 + ct) * 4; c = "0" if ks == 0 else f"v[{a}:{a+3}]"
                    A(f"v_mfma_f32_16x16x32_bf16 v[{a}:{a+3}], {self.b2_wreg(ks, ct)}, {self.b2_hreg(ks, u)}, {c}")
                    cnt += 1
                    if q and cnt % o.get('b2_space', 4) == 0: self.emitl([q.pop(0)])
        A.label(skip)
        A("s_waitcnt vmcnt(0)")
        self.stamp('b2_loop')
        A("s_nop 7")
        A("v_lshlrev_b32 v10, 4, v0")
        for u in range(1, 4):
            A(f"s_add_u32 s31, {wave}, {u}"); A("s_and_b32 s31, s31, 3"); A("s_mul_i32 s31, s31, 15360"); A(f"s_add_u32 s31, s31, {(u-1)*5120}")
            A(f"v_add_u32 v13, s31, v10")
            for ct in range(5):
                a = ACC + (u * 5 + ct) * 4
                A(f"ds_write_b128 v13, v[{a}:{a+3}] offset:{ct*1024}")
        A(f"s_mul_i32 s31, {wave}, 15360"); A(f"v_add_u32 v13, s31, v10")
        A.drain(vm=False); A("s_barrier")
        T = 84
        for ct in range(5):
            for rk in range(3):
                A(f"ds_read_b128 v[{T+(ct*3+rk)*4}:{T+(ct*3+rk)*4+3}], v13 offset:{rk*5120+ct*1024}")
        for ct in range(5):
            a = ACC + ct * 4
            for rk in range(3):
                for r in range(4): A(f"v_add_f32 v{a+r}, v{a+r}, v{T+(ct*3+rk)*4+r}")
        if not final:
            self.tile_out_frag(X2, ST2, 1, 2)
        else:
            A("s_lshl_b32 s37, s43, 4"); A("s_add_u32 s37, s37, s22"); A("s_mul_i32 s37, s37, 1280"); A("s_mul_i32 s38, s24, 160"); A("s_add_u32 s37, s37, s38")
            for ct in range(5):
                a = ACC + ct * 4
                for p in range(2):
                    rr = RES + 2 * ct + p
                    A(f"v_lshlrev_b32 v14, 16, v{rr}"); A(f"v_and_b32 v15, 0xffff0000, v{rr}")
                    A(f"v_add_f32 v{a+2*p}, v{a+2*p}, v14"); A(f"v_add_f32 v{a+2*p+1}, v{a+2*p+1}, v15")
                    A(f"v_cvt_pk_bf16_f32 v{rr}, v{a+2*p}, v{a+2*p+1}")
                A(f"buffer_store_dwordx2 v[{RES+2*ct}:{RES+2*ct+1}], v12, {SRD_OUT}, s37 offen offset:{ct*32}", tag='out')

    def apoll_issue(self, srd, soff, stride, reg=237):
        A = self.A
        A(f"v_and_b32 v236, 7, v0"); A(f"v_mul_u32_u24 v236, {stride}, v236")
        A(f"s_mov_b32 s57, {soff}")
        A(f"buffer_load_dword v{reg}, v236, {srd}, s57 offen sc1", tag='apoll')
    def apoll_check(self, srd, soff, stride, need, reg=237):
        A = self.A; l = self.lab('ap'); d = self.lab('apd')
        A("s_mov_b32 s62, 0")
        A(f"v_cmp_gt_u32 vcc, {need}, v{reg}")
        A("s_nop 1", raw=True); A("s_cmp_eq_u64 vcc, 0", raw=True); A(f"s_cbranch_scc1 {d}")
        A(f"v_and_b32 v236, 7, v0", raw=True); A(f"v_mul_u32_u24 v236, {stride}, v236", raw=True); A(f"s_mov_b32 s57, {soff}")
        A.label(l)
        A(f"buffer_load_dword v{reg}, v236, {srd}, s57 offen sc1", raw=True); A("s_waitcnt vmcnt(0)", raw=True)
        A(f"v_cmp_gt_u32 vcc, {need}, v{reg}", raw=True); A("s_add_u32 s62, s62, 1"); A("s_nop 1", raw=True)
        A("s_cmp_eq_u64 vcc, 0", raw=True); A(f"s_cbranch_scc1 {d}")
        A(f"s_cmp_lt_u32 s62, {SPIN_MAX}"); A(f"s_cbranch_scc1 {l}")
        A.label(d)
    def sA_arrive(self, layer, only=None):
        A = self.A; ws = SRD_WS
        if only: A.drain(vm=False); A.wait_vm(only)
        else: A.drain(); A("s_waitcnt vmcnt(0)")
        self.stamp('.drained')
        A("s_barrier")
        csrd, coff, roff, stride = (ws, line(L_A0C), line(L_A0R), 256) if layer == 0 else (ws, line(L_AC), line(L_AR), 256)
        A(f"s_mul_i32 s61, {sJ}, {stride}"); A(f"s_add_u32 s62, s61, {roff}")
        if coff: A(f"s_add_u32 s61, s61, {coff}")
        l = self.lab('rel')
        self.one_lane(["v_mov_b32 v254, 1", "v_mov_b32 v255, 0", f"buffer_atomic_add v254, v255, {csrd}, s61 offen sc0 sc1",
                       "s_waitcnt vmcnt(0)", "v_readfirstlane_b32 s63, v254", "s_nop 3", "s_cmp_lg_u32 s63, 31", f"s_cbranch_scc1 {l}",
                       "v_mov_b32 v254, 1", f"buffer_store_dword v254, v255, {csrd}, s62 offen sc1", f"{l}:"])
    def sA_wait(self, layer):
        A = self.A; ws = SRD_WS
        csrd, coff, roff, stride = (ws, line(L_A0C), line(L_A0R), 256) if layer == 0 else (ws, line(L_AC), line(L_AR), 256)
        A(f"s_lshl_b32 s50, {sJ}, 1"); A(f"s_sub_u32 s51, 14, s50")
        A(f"s_cmp_lt_u32 {sJ}, 4"); A("s_cselect_b32 s52, s50, s51")
        A("s_add_u32 s53, s52, 1")
        A("s_add_u32 s54, s52, 2"); A("s_and_b32 s54, s54, 7")
        A(f"s_cmp_lt_u32 {sJ}, 4"); A("s_cselect_b32 s54, s52, s54")
        lane_code = ["v_mov_b32 v255, s52", "v_mov_b32 v254, s53", "v_cmp_eq_u32 vcc, 1, v0", "s_nop 1", "v_cndmask_b32 v255, v255, v254, vcc",
                     "v_mov_b32 v254, s54", "v_cmp_eq_u32 vcc, 2, v0", "s_nop 1", "v_cndmask_b32 v255, v255, v254, vcc", f"v_mul_u32_u24 v255, {stride}, v255"]
        self.wait_ge(csrd, [f"s_mov_b32 s61, {roff}"], 1, lane_code=lane_code)
    def wait_P(self):
        lane_code = ["v_and_b32 v255, 7, v0", "v_lshlrev_b32 v255, 8, v255"]
        self.wait_ge(SRD_WS, [f"s_mov_b32 s61, {line(L_P)}"], 32, lane_code=lane_code)
    def build(self):
        A = self.A; wave = sWAVE; ws = SRD_WS; o = self.o
        self.entry()
        pmode = o.get('p_at', 6)
        self.WR = 2 if pmode == 0 else 3
        self.A1c_pre()
        self.entry_wait()
        A(f"s_lshl_b32 s61, {sWG}, 8"); A(f"s_add_u32 s61, s61, {SYNC}")
        self.one_lane(["v_mov_b32 v254, 0", "v_mov_b32 v255, 0", f"buffer_store_dword v254, v255, {ws}, s61 offen sc1"])
        self.A1b_srd()
        for st in range(5):
            self.emitl(self.A1c_xdma(st))
            if st < self.WR: self.emitl(self.A1c_wdma(st))
            if o.get('finestamp'): self.stamp(f'iss{st}')
        PB = self.PB = (self.XW + 40960) if pmode == 0 else 0
        if o.get('warmh', True):
            A(f"s_lshl_b32 s50, {sWG}, 2"); A(f"s_add_u32 s50, s50, {wave}"); A("s_lshl_b32 s50, s50, 9")
            A("v_lshlrev_b32 v6, 3, v0"); A("v_add_u32 v6, s50, v6")
            A(f"buffer_load_dwordx2 a[196:197], v6, {SRD_HRE}, 0 offen", tag='warm'); A(f"buffer_load_dwordx2 a[198:199], v6, {SRD_HIM}, 0 offen", tag='warm')
        if pmode == 0 and not o.get('warm', True): self.P_pre(PB)
        if o.get('warm', True) and o.get('warm_at', 3) < 0:
            self.warm_weights()
            if pmode == 0: self.P_pre(PB)
        self.stamp('issued')
        self.A1c_raddr()
        self.dft16_consts()
        self.A2_consts()
        self.stamp('consts')
        for layer in range(2):
            Z = (Z1, Z2)[layer]; XF = (X1F, X3F)[layer]; ST = (ST1, ST3)[layer]; HH = (HH1, HH2)[layer]
            self.ZA_bar = False
            if layer == 0:
                if self.WR == 3: self.ZA = self.XW + 61440
                else: self.ZA = self.XW; self.ZA_bar = True
                self.A1c_main(Z)
            else:
                self.ZA = 102400; self.A1b_main(Z)
            self.stamp(f'a1_end{layer}')
            self.sA_arrive(layer)
            if layer == 0:
                if o.get('finestamp'): self.stamp('f_atomic')
                if o.get('p_at', 6) == 6: self.P_pre(PB)
                if o.get('finestamp'): self.stamp('f_res')
                self.P_main(PB)
                self.stamp('p_done')

            self.A2_setup()
            if layer == 0:
                l = self.lab('pd')
                A(f"s_cmp_eq_u32 {wave}, 0"); A(f"s_cbranch_scc1 {l}"); A("s_waitcnt vmcnt(0)", raw=True); A.label(l)
            self.sA_wait(layer)
            if layer == 0:
                A(f"s_and_b32 s61, {sWG}, 7"); A("s_lshl_b32 s61, s61, 8"); A(f"s_add_u32 s61, s61, {line(L_P)}")
                self.one_lane(["v_mov_b32 v254, 1", "v_mov_b32 v255, 0", f"buffer_atomic_add v254, v255, {ws}, s61 offen sc1"])
            self.stamp(f'sA_done{layer}')
            self.A2_main(Z, XF, ST, before_out=(lambda: self.apoll_issue(ws, line(L_P), 256)) if layer == 0 else None)
            self.stamp(f'a2_end{layer}')
            self.arrive([f"s_lshl_b32 s61, {sC}, 8", f"s_add_u32 s61, s61, {line(L_B(layer))}"])
            self.B2_wbase()
            self.B1_pre(XF, ST, HH, wait_p=(lambda: self.apoll_check(ws, line(L_P), 256, 32)) if layer == 0 else None)
            self.wait_ge(ws, [f"s_lshl_b32 s61, {sC1}, 8", f"s_add_u32 s61, s61, {line(L_B(layer))}"], 16, partB=self.b1_partB)
            self.stamp(f'sB_done{layer}')
            self.b1_hook = None
            persist = o.get('b2_persist', True)
            self.B1_main(b2w=self.b2_wgroups(0, 8) if (layer == 0 or not persist) else None)
            self.stamp(f'b1_end{layer}')
            self.arrive([f"s_lshl_b32 s61, {sC1}, 8", f"s_add_u32 s61, s61, {line(L_C(layer))}"])
            self.B2_pre(HH, self.b1_left)
            self.wait_ge(ws, [f"s_lshl_b32 s61, {sC}, 8", f"s_add_u32 s61, s61, {line(L_C(layer))}"], 16, partB=self.b2_partB)
            self.stamp(f'sC_done{layer}')
            self.B2_main(final=(layer == 1))
            self.stamp(f'b2_end{layer}')
            if layer == 0:
                dcode = [f"s_lshl_b32 s61, {sC}, 1", f"s_add_u32 s61, s61, {sHALF}", "s_lshl_b32 s61, s61, 8", f"s_add_u32 s61, s61, {line(L_D)}"]
                self.arrive(dcode)
                self.A1b_pre(); self.A1b_srd()
                self.emitl(self.A1b_wdma(0))
                def pB(raw):
                    for s in range(1, 5): self.emitl(self.A1b_wdma(s), raw=raw)
                def mid():
                    self.A1b_raddr(); self.A2_consts()
                self.wait_ge(ws, dcode, 8, partB=pB, mid=mid)
                self.stamp('sD_done')
        A.drain()
        self.stamp_flush()
        if o.get('dbgstamp'):
            A("s_waitcnt vmcnt(0)"); self.dbgstamp(1)
        A.label("L_exit")
        return A.text()

LDS2 = 163840
def make(out, diag=False, name=NAME + '_kernel', **opt):
    m = Mega2(diag=diag, **opt)
    body = m.build()
    txt = kernel_block(name, body, vgpr=512, sgpr=100, accum=256)
    if out:
        open(out, 'w').write(header([f"; @launch grid=(256,1,1) block=(256,1,1) lds={LDS2}"]) + txt)
    return txt, m
if __name__ == '__main__':
    make(f'cdna_kernels/{NAME}.s')
```

```python
import re

def expand(op):
    op = op.strip()
    neg = op.lstrip('-')
    if neg.startswith('abs(') or neg.startswith('|'):
        neg = neg.replace('abs(', '').replace(')', '').replace('|', '')
    m = re.fullmatch(r'([vas])\[(\d+):(\d+)\]', neg)
    if m:
        return [f"{m.group(1)}{i}" for i in range(int(m.group(2)), int(m.group(3)) + 1)]
    m = re.fullmatch(r'([vas])(\d+)', neg)
    if m:
        return [neg]
    if neg in ('vcc',): return ['vcc_lo', 'vcc_hi']
    if neg in ('vcc_lo', 'vcc_hi', 'm0', 'scc'): return [neg]
    if neg == 'exec': return ['exec']
    return []

TRANS = ('v_exp_f32', 'v_log_f32', 'v_rcp_f32', 'v_rsq_f32', 'v_sqrt_f32', 'v_sin_f32', 'v_cos_f32', 'v_rcp_iflag_f32')
MFMA_PASSES = {'v_mfma_f32_32x32x16_bf16': 8, 'v_mfma_f32_16x16x32_bf16': 4, 'v_mfma_f32_16x16x16_bf16': 4}

class Ins:
    __slots__ = ('text', 'op', 'reads', 'writes', 'kind', 'tag', 'passes', 'srcC', 'srcAB', 'dpp', 'storedata', 'raw', 'wide')
    def __init__(self, text):
        self.text = text; self.reads = set(); self.writes = set(); self.kind = 'other'; self.tag = None
        self.passes = 0; self.srcC = set(); self.srcAB = set(); self.dpp = False; self.storedata = set(); self.raw = False; self.wide = False
        self.op = ''

def split_ops(s):
    out = []; depth = 0; cur = ''
    for ch in s:
        if ch in '[(': depth += 1
        if ch in '])': depth -= 1
        if ch == ',' and depth == 0:
            out.append(cur.strip()); cur = ''
        else:
            cur += ch
    if cur.strip(): out.append(cur.strip())
    return out

def parse(text):
    ins = Ins(text)
    t = text.split(';')[0].strip()
    if not t or t.endswith(':') or t.startswith('.'):
        ins.kind = 'label' if t.endswith(':') else 'directive'
        return ins
    parts = t.split(None, 1)
    op = parts[0]; ins.op = op
    rest = parts[1] if len(parts) > 1 else ''
    ops = split_ops(rest)
    mods = ''
    if ops:
        last = ops[-1].split()
        ops[-1] = last[0]
        mods = ' '.join(last[1:])
    R = ins.reads; W = ins.writes
    def rd(o): R.update(expand(o))
    def wr(o): W.update(expand(o))
    base = re.sub(r'_(e32|e64|dpp|sdwa)$', '', op)
    if op.startswith('v_mfma'):
        ins.kind = 'mfma'; ins.passes = MFMA_PASSES[op]
        wr(ops[0]); rd(ops[1]); rd(ops[2]); rd(ops[3])
        ins.srcAB = set(expand(ops[1]) + expand(ops[2])); ins.srcC = set(expand(ops[3]))
    elif op.startswith('buffer_load'):
        if 'lds' in mods.split():
            ins.kind = 'dma'; rd(ops[0]); rd(ops[1]); rd(ops[2]); R.add('m0')
        else:
            ins.kind = 'vload'; wr(ops[0]); rd(ops[1]); rd(ops[2]); rd(ops[3])
    elif op.startswith('buffer_store'):
        ins.kind = 'vstore'; rd(ops[0]); rd(ops[1]); rd(ops[2]); rd(ops[3])
        ins.storedata = set(expand(ops[0])); ins.wide = op.endswith('x4') or op.endswith('x3')
    elif op.startswith('buffer_atomic'):
        ins.kind = 'vstore'; rd(ops[0]); rd(ops[1]); rd(ops[2]); rd(ops[3])
        if 'sc0' in mods.split():
            ins.kind = 'vload'; wr(ops[0])
    elif op in ('buffer_inv', 'buffer_wbl2'):
        ins.kind = 'vstore'
    elif op.startswith('global_load'):
        ins.kind = 'vload'; wr(ops[0]); rd(ops[1]); rd(ops[2])
    elif op.startswith('global_store'):
        ins.kind = 'vstore'; rd(ops[0]); rd(ops[1]); rd(ops[2]); ins.storedata = set(expand(ops[1])); ins.wide = op.endswith('x4')
    elif op.startswith('ds_read') or op.startswith('ds_bpermute') or op.startswith('ds_swizzle'):
        ins.kind = 'dsread'; wr(ops[0])
        for o in ops[1:]: rd(o)
    elif op.startswith('ds_write') or op.startswith('ds_add'):
        ins.kind = 'dswrite'
        for o in ops: rd(o)
        ins.storedata = set(expand(ops[1]))
    elif op.startswith('s_load') or op in ('s_memtime', 's_memrealtime'):
        ins.kind = 'smem'; wr(ops[0])
        if len(ops) > 1: rd(ops[1])
    elif op == 's_waitcnt': ins.kind = 'wait'
    elif op == 's_nop': ins.kind = 'nop'
    elif op == 's_barrier': ins.kind = 'barrier'
    elif op.startswith('s_cbranch') or op == 's_branch':
        ins.kind = 'branch'
        if 'scc' in op: R.add('scc')
        if 'vcc' in op: R.update(['vcc_lo', 'vcc_hi'])
        if 'exec' in op: R.add('exec')
    elif op in ('s_endpgm', 's_setprio', 's_sleep'): ins.kind = 'salu'
    elif op == 's_setpc_b64':
        ins.kind = 'branch'; rd(ops[0])
    elif op == 's_getpc_b64':
        ins.kind = 'salu'; wr(ops[0])
    elif op.startswith('s_cmp') or op.startswith('s_bitcmp'):
        ins.kind = 'salu'; W.add('scc')
        for o in ops: rd(o)
    elif op.startswith('s_'):
        ins.kind = 'salu'
        wr(ops[0])
        for o in ops[1:]: rd(o)
        if 'saveexec' in op: W.add('exec'); R.add('exec')
        if op in ('s_cselect_b32', 's_cselect_b64', 's_addc_u32', 's_subb_u32'): R.add('scc')
        if op not in ('s_mov_b32', 's_mov_b64', 's_cselect_b32', 's_cselect_b64', 's_mul_i32', 's_mul_hi_u32', 's_getreg_b32', 's_movk_i32'): W.add('scc')
        if op in ('s_addk_i32', 's_mulk_i32'): rd(ops[0])
    elif op.startswith('v_'):
        ins.kind = 'trans' if base in TRANS else 'valu'
        if 'dpp' in op or 'row_' in mods or 'quad_perm' in mods: ins.dpp = True
        if base.startswith('v_cmp'):
            wr(ops[0])
            for o in ops[1:]: rd(o)
            if base.startswith('v_cmpx'): W.add('exec')
        elif base.startswith('v_permlane') and 'swap' in base:
            wr(ops[0]); wr(ops[1]); rd(ops[0]); rd(ops[1]); ins.kind = 'permlane'
        elif base == 'v_writelane_b32':
            wr(ops[0]); rd(ops[0]); rd(ops[1])
        elif base in ('v_readfirstlane_b32', 'v_readlane_b32'):
            ins.kind = 'readlane'; wr(ops[0])
            for o in ops[1:]: rd(o)
        elif base in ('v_add_co_u32', 'v_sub_co_u32', 'v_addc_co_u32'):
            wr(ops[0]); wr(ops[1])
            for o in ops[2:]: rd(o)
            if base == 'v_addc_co_u32': R.update(['vcc_lo', 'vcc_hi'])
        else:
            wr(ops[0])
            for o in ops[1:]: rd(o)
            if base in ('v_fmac_f32', 'v_dot2c_f32_bf16', 'v_mac_f32', 'v_pk_fmac_f16'): rd(ops[0])
            if base == 'v_cndmask_b32' and len(ops) == 3: R.update(['vcc_lo', 'vcc_hi'])
            if ins.dpp: rd(ops[0])
        R.add('exec')
    else:
        raise ValueError('unknown instruction: ' + text)
    return ins

VM_KINDS = ('vload', 'vstore', 'dma')
DS_KINDS = ('dsread', 'dswrite')

class Asm:
    def __init__(self):
        self.ins = []
    def I(self, text, tag=None, raw=False):
        for line in text.split('\n'):
            line = line.strip()
            if not line: continue
            i = parse(line); i.tag = tag; i.raw = raw
            self.ins.append(i)
    __call__ = I
    def label(self, name): self.I(name + ':')
    def wait_vm(self, tags):
        i = Ins(''); i.kind = 'waitvm'; i.tag = set(tags) if not isinstance(tags, str) else {tags}; self.ins.append(i)
    def wait_ds(self, tags=None):
        i = Ins(''); i.kind = 'waitds'; i.tag = None if tags is None else (set(tags) if not isinstance(tags, str) else {tags}); self.ins.append(i)
    def drain(self, vm=True, ds=True):
        i = Ins(''); i.kind = 'drain'; i.tag = (vm, ds); self.ins.append(i)
    def phantom_vm(self, tag, n=1):
        for _ in range(n):
            i = Ins(''); i.kind = 'phantom'; i.tag = tag; self.ins.append(i)
    def comment(self, s):
        i = Ins('; ' + s); i.kind = 'directive'; self.ins.append(i)

    def _waits(self):
        out = []
        vm = []
        ds = []
        def emit_wait(nvm=None, nds=None):
            parts = []
            if nvm is not None: parts.append(f"vmcnt({min(nvm,63)})")
            if nds is not None: parts.append(f"lgkmcnt({min(nds,15)})")
            if parts:
                w = parse('s_waitcnt ' + ' '.join(parts)); out.append(w)
        def need(lst, pred):
            for idx in range(len(lst) - 1, -1, -1):
                if pred(lst[idx]): return len(lst) - 1 - idx
            return None
        for i in self.ins:
            if i.kind == 'phantom':
                vm.append(i)
                if len(vm) > 63: del vm[:len(vm) - 63]
                continue
            if i.kind == 'waitvm':
                n = need(vm, lambda p: p.tag in i.tag)
                if n is not None:
                    emit_wait(nvm=n); del vm[:len(vm) - n]
                continue
            if i.kind == 'waitds':
                n = need(ds, (lambda p: True) if i.tag is None else (lambda p: p.tag in i.tag))
                if n is not None:
                    emit_wait(nds=n); del ds[:len(ds) - n]
                continue
            if i.kind == 'drain':
                a = 0 if (i.tag[0] and vm) else None
                b = 0 if (i.tag[1] and ds) else None
                emit_wait(a, b)
                if i.tag[0]: vm.clear()
                if i.tag[1]: ds.clear()
                continue
            if i.kind in ('label', 'branch') and not i.raw:
                if any(p.writes for p in vm) or any(p.writes for p in ds):
                    pass
            if i.kind == 'wait' and i.raw:
                out.append(i); continue
            if i.kind == 'wait':
                m = re.search(r'vmcnt\((\d+)\)', i.text)
                if m:
                    n = int(m.group(1))
                    if len(vm) > n: del vm[:len(vm) - n]
                m = re.search(r'lgkmcnt\((\d+)\)', i.text)
                if m:
                    n = int(m.group(1))
                    if len(ds) > n: del ds[:len(ds) - n]
                out.append(i); continue
            if not i.raw:
                touch = i.reads | i.writes
                nvm = need(vm, lambda p: bool(p.writes & touch))
                nds = need(ds, lambda p: bool(p.writes & touch))
                if nvm is not None or nds is not None:
                    emit_wait(nvm, nds)
                    if nvm is not None: del vm[:len(vm) - nvm]
                    if nds is not None: del ds[:len(ds) - nds]
            out.append(i)
            if i.kind in VM_KINDS and not i.raw:
                vm.append(i)
                if len(vm) > 63: del vm[:len(vm) - 63]
            if i.kind in DS_KINDS and not i.raw:
                ds.append(i)
                if len(ds) > 15: del ds[:len(ds) - 15]
            if i.kind == 'smem' and not i.raw:
                pass
        return out

    @staticmethod
    def _need_states(p, c):
        n = 0
        valu_like = ('valu', 'trans', 'permlane', 'readlane')
        pv = p.kind in valu_like
        vregs = lambda s: {r for r in s if r[0] in 'va' and r[1:].isdigit()}
        sregs = lambda s: {r for r in s if (r[0] == 's' and r[1:].isdigit()) or r.startswith('vcc')}
        if p.kind == 'mfma':
            D = p.writes
            if c.kind == 'mfma':
                if D & c.srcAB: n = max(n, {4: 8, 8: 12}[p.passes])
                if D & c.srcC:
                    if not (c.srcC == D and c.passes == p.passes): n = max(n, {4: 6, 8: 10}[p.passes])
                if (D & c.writes) and not (c.writes == D and c.srcC == D and c.passes == p.passes):
                    n = max(n, {4: 6, 8: 10}[p.passes])
            elif c.kind in valu_like or c.kind in VM_KINDS or c.kind in DS_KINDS:
                if D & (c.reads | c.writes): n = max(n, {4: 8, 8: 12}[p.passes])
            if c.kind in valu_like and (p.srcC & c.writes): n = max(n, {4: 3, 8: 7}[p.passes])
        if pv:
            wv = vregs(p.writes); ws = sregs(p.writes)
            if c.kind == 'mfma' and (wv & c.reads): n = max(n, 2)
            if c.kind in VM_KINDS and (ws & c.reads): n = max(n, 5)
            if c.kind in valu_like and (ws & c.reads): n = max(n, 2)
            if c.kind == 'readlane' and (wv & c.reads): n = max(n, 1)
            if c.kind == 'readlane' and (ws & c.reads): n = max(n, 4)
            if p.kind == 'trans' and c.kind in valu_like + ('mfma',) and c.kind != 'trans' and (wv & c.reads): n = max(n, 1)
            if p.kind == 'trans' and c.kind == 'trans' and (wv & c.reads): n = max(n, 1)
            if c.dpp and (wv & c.reads): n = max(n, 2)
            if c.kind == 'permlane' and (wv & c.reads): n = max(n, 2)
            if 'exec' in p.writes and c.dpp: n = max(n, 5)
            if 'exec' in p.writes and c.kind == 'mfma': n = max(n, 4)
        if p.op.startswith('v_dot2') and (p.writes & (c.reads | c.writes)):
            if not (c.op == p.op and not (p.writes & (c.reads - c.writes)) ):
                n = max(n, 3)
        if p.kind in ('vstore',) and p.wide and (p.storedata & c.writes):
            n = max(n, 2 if c.kind in valu_like else 1)
        if p.kind == 'dswrite' and len(p.storedata) >= 3 and (p.storedata & c.writes):
            n = max(n, 2 if c.kind in valu_like else 1)
        if p.kind == 'salu' and 'm0' in p.writes and c.kind == 'dma': n = max(n, 1)
        return n

    def _hazards(self, ins):
        out = []
        WINDOW = 16
        hists = [[]]
        ages = [None]
        snaps = {}
        nnop = 0
        def need_for(hist, c):
            need = 0; dist = 0
            for p in reversed(hist):
                r = self._need_states(p, c)
                if r > dist: need = max(need, r - dist)
                dist += (int(p.text.split()[1], 0) + 1) if p.kind == 'nop' else 1
                if dist >= WINDOW: break
            return need
        def push(x):
            for h in hists:
                h.append(x)
                if len(h) > 2 * WINDOW: del h[:WINDOW]
            for k in range(len(hists) - 1, 0, -1):
                ages[k] += 1
                if ages[k] > WINDOW: del hists[k]; del ages[k]
        for c in ins:
            if c.kind == 'directive':
                out.append(c); continue
            if c.kind == 'label':
                name = c.text.strip()[:-1]
                for h in snaps.pop(name, []):
                    hists.append(h); ages.append(0)
                out.append(c); continue
            need = max(need_for(h, c) for h in hists)
            while need > 0:
                k = min(need, 16)
                nop = parse(f's_nop {k-1}'); out.append(nop); push(nop); need -= k; nnop += 1
            out.append(c); push(c)
            if c.kind == 'branch' and c.op != 's_setpc_b64':
                tgt = c.text.split()[1]
                snaps.setdefault(tgt, []).append(list(hists[0][-WINDOW:]))
        self.nnop = nnop
        return out

    def text(self):
        ins = self._hazards(self._waits())
        lines = []
        for i in ins:
            if i.kind == 'label': lines.append(i.text)
            else: lines.append('    ' + i.text)
        return '\n'.join(lines) + '\n'

def kernel_block(name, body, vgpr, sgpr=100, accum=None):
    if accum is None: accum = min(256, (vgpr + 3) // 4 * 4)
    return f""".text
.globl {name}
.p2align 8
.type {name},@function
{name}:
{body}    s_endpgm
.section .rodata,"a"
.p2align 6
.amdhsa_kernel {name}
  .amdhsa_next_free_vgpr {vgpr}
  .amdhsa_next_free_sgpr {sgpr}
  .amdhsa_accum_offset {accum}
  .amdhsa_group_segment_fixed_size 0
  .amdhsa_kernarg_size 96
  .amdhsa_user_sgpr_count 2
  .amdhsa_user_sgpr_kernarg_segment_ptr 1
  .amdhsa_system_sgpr_workgroup_id_x 1
.end_amdhsa_kernel
"""
```

```python
import sys
import mega
from mega import *

L_P = 112
L_Q = 168
L_E = lambda layer: 136 + 16 * layer
L_A0C, L_A0R = 120, 128

def tile_pos(T):
    if T < 98:
        i, t = divmod(T, 7)
        if t < 4: return 4 * i + t
        if t < 6:
            r = 2 * i + (t - 4)
            return 56 + r if r < 24 else (80 + r - 24 if r < 26 else 88 + r - 26)
        r = i
    else: r = 14 + T - 98
    return 82 + r if r < 6 else (90 + r - 6 if r < 12 else 96 + r - 12)
POS = [tile_pos(T) for T in range(108)]
assert sorted(POS) == list(range(108))
L_E1 = lambda layer: 195 + 16 * layer

class Mega3(Mega):
    def entry(self):
        A = self.A
        A("s_cmp_ge_u32 s2, 256"); A("s_cbranch_scc1 L_exit")
        load_srd(A, 8, KA['x'], S*D*2); load_srd(A, 12, KA['hre'], D*D*2); load_srd(A, 16, KA['him'], D*D*2)
        load_srd(A, 4, KA['ws'], WS_USED)
        load_srd(A, 76, KA['wg'], D*F*2); load_srd(A, 80, KA['wu'], D*F*2); load_srd(A, 84, KA['wd'], D*F*2)
        load_srd(A, 88, KA['dbg'], 256); load_srd(A, 92, KA['out'], S*D*2)
        A("v_lshrrev_b32 v1, 6, v0"); A("v_and_b32 v0, 63, v0"); A(f"v_readfirstlane_b32 {sWAVE}, v1"); A(f"s_mov_b32 {sWG}, s2")
        self.code_prefetch(65536)
        self.GST = '' if self.o.get('gmap') else SC1
        self.GAT = self.o.get('gat', ' sc1')
        if self.o.get('gmap'):
            A(f"s_and_b32 s25, {sWG}, 7"); A("s_lshl_b32 s25, s25, 1"); A(f"s_bfe_u32 s26, {sWG}, 0x10003"); A(f"s_add_u32 {sC}, s25, s26")
            A(f"s_lshr_b32 {sI1}, {sWG}, 4"); A(f"s_mov_b32 {sC1}, {sC}")
            A(f"s_lshr_b32 {sHALF}, {sI1}, 3"); A(f"s_and_b32 {sJ}, {sI1}, 7")
            A(f"s_mul_i32 {sT0}, {sI1}, 7"); A(f"s_min_u32 {sT0}, {sT0}, 101")
            return
        A(f"s_and_b32 s25, {sWG}, 7"); A(f"s_lshr_b32 s26, {sWG}, 3")
        A(f"s_and_b32 {sC}, s25, 3"); A(f"s_lshl_b32 {sC}, {sC}, 2"); A("s_lshr_b32 s27, s26, 3"); A(f"s_add_u32 {sC}, {sC}, s27")
        A(f"s_lshr_b32 {sHALF}, s26, 2"); A(f"s_and_b32 {sHALF}, {sHALF}, 1")
        A(f"s_lshr_b32 {sJ}, s25, 2"); A(f"s_lshl_b32 {sJ}, {sJ}, 2"); A("s_and_b32 s27, s26, 3"); A(f"s_add_u32 {sJ}, {sJ}, s27")
        A(f"s_and_b32 {sC1}, s25, 1"); A(f"s_lshl_b32 {sC1}, {sC1}, 3"); A("s_lshr_b32 s27, s26, 2"); A(f"s_add_u32 {sC1}, {sC1}, s27")
        A(f"s_lshr_b32 {sI1}, s25, 1"); A(f"s_lshl_b32 {sI1}, {sI1}, 2"); A("s_and_b32 s27, s26, 3"); A(f"s_add_u32 {sI1}, {sI1}, s27")
        A(f"s_mul_i32 {sT0}, {sI1}, 7"); A(f"s_min_u32 {sT0}, {sT0}, 101")
    def code_prefetch(self, nbytes):
        A = self.A
        A("s_getpc_b64 s[30:31]")
        A.label("L_pfpc")
        n = (nbytes + 32767) // 32768
        A("v_lshlrev_b32 v1, 7, v0"); A(f"s_lshl_b32 s36, {sWAVE}, 13"); A("v_add_u32 v1, s36, v1")
        A("s_mov_b32 s37, L_exit-L_pfpc")
        for i in range(n):
            A("v_min_u32 v2, s37, v1")
            A("v_mov_b32 v5, s31"); A("v_add_co_u32 v4, vcc, s30, v2"); A("v_addc_co_u32 v5, vcc, 0, v5, vcc")
            A(f"global_load_dword v{234+i}, v[4:5], off", raw=True)
            if i + 1 < n: A("v_add_u32 v1, 0x8000, v1")
    def entry_wait(self):
        A = self.A
        A("s_waitcnt lgkmcnt(0)")
        if self.diag:
            A("s_mov_b32 s96, s4"); A("s_mov_b32 s97, s5"); A("s_mov_b32 s98, 0x4000000"); A("s_mov_b32 s99, 0x20000")
        self.stamp('start')
        if self.o.get('dbgstamp'): self.dbgstamp(0)

    def P_pre(self, PB):
        A = self.A; wave = sWAVE; wg = sWG; R = dict(raw=True)
        wd = self.lab('pwd'); e1 = self.lab('pe1')
        A(f"s_cmp_ge_u32 {wg}, 135"); A(f"s_cbranch_scc1 {wd}")
        s_udiv(A, 's40', wg, 5, 256)
        A(f"s_mul_i32 s41, s40, 5"); A(f"s_sub_u32 s41, {wg}, s41")
        A("v_lshrrev_b32 v1, 3, v0"); A("v_and_b32 v2, 7, v0"); A("v_and_b32 v3, 2, v1")
        A("v_xor_b32 v4, v2, v3"); A("v_xor_b32 v5, 4, v4"); A("v_mul_u32_u24 v6, 3456, v1")
        A("v_lshl_add_u32 v4, v4, 4, v6"); A("v_lshl_add_u32 v5, v5, 4, v6")
        A(f"s_lshl_b32 s42, s41, 7"); A(f"s_lshl_b32 s43, {wave}, 5"); A("s_add_u32 s42, s42, s43")
        A("s_mul_i32 s42, s42, 3456"); A("s_lshl_b32 s43, s40, 7"); A("s_add_u32 s42, s42, s43")
        A(f"s_lshl_b32 s47, {wave}, 12"); A(f"s_add_u32 s47, s47, {PB}")
        for i in range(4):
            A(f"s_add_u32 m0, s47, {i*1024}"); A(f"s_add_u32 s45, s42, {i*8*3456}")
            A(f"buffer_load_dwordx4 v4, {SRD_WG}, s45 offen lds", **R)
            A(f"s_add_u32 m0, s47, {16384+i*1024}"); A("s_nop 0", **R)
            A(f"buffer_load_dwordx4 v5, {SRD_WU}, s45 offen lds", **R)
        A(f"s_branch {e1}")
        A.label(wd)
        A(f"s_sub_u32 s40, {wg}, 135"); A("s_sub_u32 s43, s40, 108"); A("s_cmp_ge_u32 s40, 108"); A("s_cselect_b32 s40, s43, s40")
        A("s_mul_i32 s42, s40, 20480")
        for i in range(8):
            if i < 5:
                A(f"s_mul_i32 s43, {wave}, 5"); A(f"s_add_u32 s43, s43, {i}"); A("s_lshl_b32 s47, s43, 6")
                A("v_add_u32 v1, s47, v0")
                v_udiv(A, 'v2', 'v1', 80, 1280)
                A("v_mul_u32_u24 v3, 80, v2"); A("v_sub_u32 v3, v1, v3")
                A("v_and_b32 v4, 3, v2"); A("v_bfe_u32 v5, v2, 3, 1"); A("v_lshl_or_b32 v4, v5, 2, v4")
                A("v_lshlrev_b32 v4, 1, v4"); A("v_xor_b32 v3, v3, v4")
                A("v_mul_u32_u24 v2, 1280, v2"); A(f"v_lshl_add_u32 v6, v3, 4, v2")
                A("s_lshl_b32 s47, s43, 10"); A(f"s_add_u32 m0, s47, {PB}"); A("s_nop 0", **R)
            A(f"buffer_load_dwordx4 v6, {SRD_WD}, s42 offen lds", **R)
        A.label(e1)
        A.phantom_vm('pdma', 8)
    def P_main(self, PB):
        A = self.A; wave = sWAVE; wg = sWG; ws = SRD_WS; R = dict(raw=True)
        wd = self.lab('pmwd'); done = self.lab('pmdone')
        A.wait_vm('pdma'); A("s_barrier")
        if self.o.get('finestamp'): self.stamp('f_pwait')
        A(f"s_cmp_ge_u32 {wg}, 135"); A(f"s_cbranch_scc1 {wd}")
        A("v_lshrrev_b32 v1, 4, v0"); A("v_and_b32 v2, 1, v1"); A("v_lshrrev_b32 v3, 1, v1"); A("v_bfe_u32 v6, v0, 2, 2"); A("v_and_b32 v7, 3, v0")
        A("v_lshl_add_u32 v8, v3, 3, v6"); A("v_lshlrev_b32 v8, 7, v8"); A("v_lshl_add_u32 v8, v2, 14, v8")
        A("v_and_b32 v9, 1, v7"); A(f"s_lshl_b32 s46, {wave}, 1"); A("v_add_u32 v9, s46, v9")
        A("v_and_b32 v10, 2, v6"); A("v_lshl_or_b32 v10, v2, 2, v10"); A("v_xor_b32 v9, v9, v10")
        A("v_lshl_add_u32 v8, v9, 4, v8"); A("v_lshrrev_b32 v7, 1, v7"); A("v_lshl_add_u32 v8, v7, 3, v8"); A(f"v_add_u32 v8, {PB}, v8")
        A(f"s_lshl_b32 s46, s40, 2"); A(f"s_add_u32 s46, s46, {wave}")
        A("s_mul_i32 s47, s46, 40"); A("s_lshl_b32 s48, s41, 3"); A("s_add_u32 s47, s47, s48"); A("s_lshl_b32 s47, s47, 10"); A(f"s_add_u32 s47, s47, {W1F}")
        A("v_lshlrev_b32 v11, 4, v0"); A("v_mov_b32 v12, 0"); A("s_mov_b32 s49, 0x3f803f80")
        for q in range(8):
            r = 64 + 4 * q
            A(f"ds_read_b64_tr_b16 v[{r}:{r+1}], v8 offset:{q*2048}", **R); A(f"ds_read_b64_tr_b16 v[{r+2}:{r+3}], v8 offset:{q*2048+512}", **R)
            if q == 3: A("s_waitcnt lgkmcnt(4)", **R)
        for q in range(8):
            r = 64 + 4 * q
            A(f"s_add_u32 s48, s47, {q*1024}")
            if q == 0: A("s_waitcnt lgkmcnt(8)", **R)
            if q == 4: A("s_waitcnt lgkmcnt(0)", **R)
            A(f"buffer_store_dwordx4 v[{r}:{r+3}], v11, {ws}, s48 offen{SC1}", **R)
            for j in range(4): A(f"v_dot2c_f32_bf16 v12, s49, v{r+j}")
        A("v_mov_b32 v13, v12"); A("v_permlane32_swap_b32 v12, v13"); A("v_add_f32 v12, v12, v13")
        A("s_mul_i32 s47, s41, 108"); A("s_add_u32 s47, s47, s46"); A("s_lshl_b32 s47, s47, 7"); A(f"s_add_u32 s47, s47, {CSP}")
        A("v_and_b32 v13, 31, v0"); A("v_lshlrev_b32 v13, 2, v13")
        A(f"buffer_store_dword v12, v13, {ws}, s47 offen{SC1}", **R)
        A(f"s_branch {done}")
        A.label(wd)
        A("v_lshrrev_b32 v1, 4, v0"); A("v_lshrrev_b32 v2, 1, v1"); A("v_and_b32 v3, 1, v1"); A("v_bfe_u32 v6, v0, 2, 2"); A("v_and_b32 v7, 3, v0")
        A("v_lshl_add_u32 v8, v3, 3, v6"); A("v_lshl_or_b32 v10, v3, 2, v6"); A("v_lshlrev_b32 v10, 1, v10"); A("v_mul_u32_u24 v8, 1280, v8"); A(f"v_add_u32 v8, {PB}, v8")
        s_udiv(A, 's46', 's40', 7, 128); A("s_mul_i32 s47, s46, 7"); A("s_sub_u32 s47, s40, s47")
        A("s_lshl_b32 s48, s46, 2"); A("s_add_u32 s48, s48, s47")
        A("s_lshl_b32 s49, s46, 1"); A("s_add_u32 s49, s49, s47"); A("s_add_u32 s50, s49, 52"); A("s_add_u32 s51, s49, 58")
        A("s_cmp_ge_u32 s49, 30"); A("s_cselect_b32 s49, s51, s50")
        A("s_cmp_lt_u32 s47, 4"); A("s_cselect_b32 s48, s48, s49")
        A("s_add_u32 s50, s46, 82"); A("s_add_u32 s51, s46, 84"); A("s_cmp_ge_u32 s46, 6"); A("s_cselect_b32 s49, s51, s50")
        A("s_cmp_eq_u32 s47, 6"); A("s_cselect_b32 s48, s49, s48")
        A("s_cmp_ge_u32 s40, 98"); A("s_cselect_b32 s48, s40, s48")
        A("s_and_b32 s46, s48, 1"); A("s_lshr_b32 s47, s48, 1")
        A("v_and_b32 v11, 31, v0"); A("s_lshl_b32 s48, s46, 5"); A("v_add_u32 v11, s48, v11"); A("v_lshlrev_b32 v11, 4, v11")
        for i in range(5):
            A(f"s_mul_i32 s48, {wave}, 10"); A(f"s_add_u32 s48, s48, {2*i}"); A("v_add_u32 v1, s48, v2")
            A("v_lshrrev_b32 v3, 1, v7"); A("v_lshl_add_u32 v3, v1, 1, v3"); A("v_xor_b32 v3, v3, v10"); A("v_lshl_add_u32 v3, v3, 4, v8")
            A("v_and_b32 v4, 1, v7"); A("v_lshl_add_u32 v3, v4, 3, v3")
            r = 64 + 4 * i
            A(f"ds_read_b64_tr_b16 v[{r}:{r+1}], v3", **R); A(f"ds_read_b64_tr_b16 v[{r+2}:{r+3}], v3 offset:{4*1280}", **R)
            v_udiv(A, 'v4', 'v1', 5, 40)
            A("v_mul_u32_u24 v5, 5, v4"); A("v_sub_u32 v5, v1, v5"); A("v_mul_u32_u24 v4, 270, v4"); A("v_add_u32 v4, v4, v5")
            A("s_mul_i32 s48, s47, 5"); A("v_add_u32 v4, s48, v4"); A(f"v_lshl_add_u32 v{90+i}, v4, 10, v11")
        A("s_waitcnt lgkmcnt(0)", **R)
        A(f"s_mov_b32 s48, {WDF}")
        for i in range(9):
            r = 64 + 4 * min(i, 4)
            A(f"buffer_store_dwordx4 v[{r}:{r+3}], v{90+min(i, 4)}, {ws}, s48 offen{SC1}", **R)
        A.label(done)
        A.phantom_vm('pst', 9)

    def A2_consts(self):
        A = self.A; wave = sWAVE; t = 48
        A(f"v_and_b32 v{t}, 15, v0"); A(f"v_lshrrev_b32 v{t+1}, 4, v0")
        A(f"s_lshl_b32 s55, {sHALF}, 2"); A(f"s_add_u32 s55, s55, {wave}"); A("s_lshl_b32 s55, s55, 4"); A(f"s_add_u32 s55, s55, {sC}")
        A(f"v_lshl_add_u32 v{t}, v{t}, 7, s55")
        A(f"v_lshrrev_b32 v{t+2}, 1, v{t+1}"); A(f"v_and_b32 v{t+1}, 1, v{t+1}"); A(f"v_lshl_add_u32 v{t+1}, v{t+1}, 6, v{t+2}")
        A(f"s_cmp_lt_u32 {sJ}, 4"); A(f"s_mov_b32 s56, {f2u(1/2048):#x}"); A(f"s_cselect_b32 s56, s56, {f2u(-1/2048):#x}")
        A(f"v_cvt_f32_u32 v{t}, v{t}"); A(f"v_cvt_f32_u32 v{t+1}, v{t+1}"); A(f"v_mul_f32 v{t}, s56, v{t}")
        A(f"v_mul_f32 v{t+1}, v{t}, v{t+1}")
        A(f"v_add_f32 v{t+2}, v{t}, v{t}"); A(f"v_mul_f32 v{t}, {f2u(16.0):#x}, v{t}")
        for q in range(8):
            A(f"v_fract_f32 v{t+3}, v{t+1}")
            A(f"v_add_f32 v{t+4}, v{t+1}, v{t}"); A(f"v_add_f32 v{t+5}, v{t+4}, v{t}"); A(f"v_add_f32 v{t+6}, v{t+5}, v{t}")
            for i in range(1, 4): A(f"v_fract_f32 v{t+3+i}, v{t+3+i}")
            if q < 7: A(f"v_add_f32 v{t+1}, v{t+1}, v{t+2}")
            for i in range(4): A(f"v_cos_f32 v{t+7+i}, v{t+3+i}")
            for i in range(4): A(f"v_sin_f32 v{t+3+i}, v{t+3+i}")
            A(f"v_cvt_pk_bf16_f32 v{t+7}, v{t+7}, v{t+8}"); A(f"v_cvt_pk_bf16_f32 v{t+8}, v{t+9}, v{t+10}")
            A(f"v_cvt_pk_bf16_f32 v{t+3}, v{t+3}, v{t+4}"); A(f"v_cvt_pk_bf16_f32 v{t+4}, v{t+5}, v{t+6}")
            b = 128 + 4 * q
            A(f"v_accvgpr_write_b32 a{b}, v{t+7}"); A(f"v_accvgpr_write_b32 a{b+1}, v{t+8}")
            A(f"v_accvgpr_write_b32 a{b+2}, v{t+3}"); A(f"v_accvgpr_write_b32 a{b+3}, v{t+4}")

    def A1_tail_pre(self, Z, vg, vm, ZA):
        A = self.A; wave = sWAVE
        A("v_mov_b32 v45, 1.0"); A("v_mov_b32 v6, -1.0"); A(f"v_cmp_gt_u32 vcc, 8, v{vm}"); A("v_cndmask_b32 v45, v6, v45, vcc")
        A(f"v_and_b32 v3, 7, v{vm}"); A(f"v_lshrrev_b32 v4, 3, v{vm}")
        A("v_lshlrev_b32 v3, 4, v3"); A("v_lshl_add_u32 v3, v4, 3, v3")
        A(f"v_mul_u32_u24 v4, 2560, v{vg}"); A("v_add_u32 v3, v3, v4")
        A(f"s_lshl_b32 s53, {wave}, 1"); A("v_add_u32 v3, s53, v3"); A(f"v_add_u32 v44, {ZA}, v3")
        A(f"s_lshl_b32 s53, {wave}, 6"); A("v_add_u32 v7, s53, v0")
        A(f"s_lshl_b32 s54, {sC}, 1"); A(f"s_add_u32 s54, s54, {sHALF}"); A("s_mul_i32 s54, s54, 320"); A(f"s_mul_i32 s53, {sJ}, 40"); A("s_add_u32 s54, s54, s53")
        A("s_lshl_b32 s54, s54, 4"); A(f"s_add_u32 s54, s54, {Z}")
        for u in range(3):
            A(f"v_add_u32 v8, {256*u}, v7")
            v_udiv(A, 'v9', 'v8', 40, 768)
            A("v_mul_u32_u24 v6, 40, v9"); A("v_sub_u32 v6, v8, v6")
            A(f"v_mul_u32_u24 v9, {32*5120}, v9"); A(f"v_lshl_add_u32 v{38+u}, v6, 4, v9")
            A(f"v_lshlrev_b32 v8, 4, v8"); A(f"v_add_u32 v{41+u}, {ZA}, v8")
    def A1_tail(self, Z, vg, vm, PB, PP, PQ, ZV):
        A = self.A; wave = sWAVE; ws = SRD_WS; ACC = 64
        for ct in range(5):
            a = ACC + 4 * ct
            for r in range(4): A(f"v_mul_f32 v{a+r}, v{a+r}, v{48+r}")
            A(f"v_cvt_pk_bf16_f32 v{PB+2*ct}, v{a}, v{a+1}"); A(f"v_cvt_pk_bf16_f32 v{PB+2*ct+1}, v{a+2}, v{a+3}")
        for ct in range(5):
            b = PB + 2 * ct
            A(f"v_mfma_f32_16x16x16_bf16 v[{PP+4*ct}:{PP+4*ct+3}], v[{vC16}:{vC16+1}], v[{b}:{b+1}], 0")
            A(f"v_mfma_f32_16x16x16_bf16 v[{PQ+4*ct}:{PQ+4*ct+3}], v[{vS16}:{vS16+1}], v[{b}:{b+1}], 0")
        if self.ZA_bar: A("s_barrier")
        for ct in range(5):
            for r in range(4):
                A(f"v_fmac_f32_dpp v{PP+4*ct+r}, v{PQ+4*ct+r}, v45 row_ror:8 row_mask:0xf bank_mask:0xf")
            for p in range(2):
                z = ZV + 2 * ct + p
                A(f"v_cvt_pk_bf16_f32 v{z}, v{PP+4*ct+2*p}, v{PP+4*ct+2*p+1}")
                A(f"ds_write_b16 v44, v{z} offset:{(2*p)*640 + ct*128}")
                A(f"ds_write_b16_d16_hi v44, v{z} offset:{(2*p+1)*640 + ct*128}")
        A.drain(vm=False); A("s_barrier")
        ZR = ZV + 10; ZR += (-ZR) % 2
        for u in range(3): A(f"ds_read_b128 v[{ZR+4*u}:{ZR+4*u+3}], v{41+u}")
        for u in range(2):
            A(f"buffer_store_dwordx4 v[{ZR+4*u}:{ZR+4*u+3}], v{38+u}, {ws}, s54 offen{SC1}", tag='z')
        l = self.lab('zs')
        A.drain(vm=False)
        A(f"s_cmp_ge_u32 {wave}, 2"); A(f"s_cbranch_scc1 {l}")
        A(f"buffer_store_dwordx4 v[{ZR+8}:{ZR+11}], v40, {ws}, s54 offen{SC1}", raw=True)
        A.label(l)

    def A1a_main(self, Z):
        A = self.A; R = 3
        ACC = 64; FA = 96; FB = 112; vSum, vSq = 44, 45
        A(f"v_mov_b32 v{vSum}, 0"); A(f"v_mov_b32 v{vSq}, 0"); A("s_mov_b32 s34, 0x3f803f80")
        def reads(k):
            s, qq = divmod(k, 4); slot = s % R; hi = 4 if slot >= 2 else 0; off = (slot % 2) * self.STG if slot < 2 else 0
            fa = FA + 4 * (k % 2); fb = FB + 20 * (k % 2)
            L = [f"ds_read_b128 v[{fa}:{fa+3}], v{24+hi+qq} offset:{off}"]
            for ct in range(5): L.append(f"ds_read_b128 v[{fb+4*ct}:{fb+4*ct+3}], v{32+hi+qq} offset:{off+ct*4096}")
            return L
        dq = []; issued = {0, 1, 2}
        def dx(s): return self.A1_dma_x3(s)
        def enter(s):
            A.wait_vm(f"a1s{s}"); A("s_barrier")
            for nx in range(5):
                if nx not in issued and nx <= s + R - 1:
                    dq.extend(self.A1_dma_x3(nx)); dq.extend(self.A1_dma_w3(nx)); issued.add(nx)
        enter(0)
        self.stamp('a1_first')
        for x in reads(0): A(x)
        for k in range(20):
            nk = k + 1
            if nk < 20:
                if nk % 4 == 0:
                    while dq: self.emitl([dq.pop(0)])
                    A.wait_ds(); enter(nk // 4)
                rl = reads(nk)
            else: rl = []
            fa = FA + 4 * (k % 2); fb = FB + 20 * (k % 2)
            for ct in range(5):
                a = ACC + 4 * ct; c = "0" if k == 0 else f"v[{a}:{a+3}]"
                A(f"v_mfma_f32_16x16x32_bf16 v[{a}:{a+3}], v[{fa}:{fa+3}], v[{fb+4*ct}:{fb+4*ct+3}], {c}")
                if rl: A(rl.pop(0))
                if ct < 4:
                    A(f"v_dot2c_f32_bf16 v{vSq}, v{fa+ct}, v{fa+ct}"); A(f"v_dot2c_f32_bf16 v{vSum}, s34, v{fa+ct}")
                if dq: self.emitl([dq.pop(0)])
            while rl: A(rl.pop(0))
        self.stamp('a1_loop')
        for v in (vSum, vSq):
            A(f"v_mov_b32 v3, v{v}"); A(f"v_permlane16_swap_b32 v{v}, v3"); A(f"v_add_f32 v{v}, v{v}, v3")
            A(f"v_mov_b32 v3, v{v}"); A(f"v_permlane32_swap_b32 v{v}, v3"); A(f"v_add_f32 v{v}, v{v}, v3")
        A(f"v_mul_f32 v{vSum}, {f2u(1/640):#x}, v{vSum}"); A(f"v_mul_f32 v{vSq}, {f2u(1/640):#x}, v{vSq}")
        A(f"v_fma_f32 v{vSq}, -v{vSum}, v{vSum}, v{vSq}"); A(f"v_add_f32 v{vSq}, {f2u(1e-5):#x}, v{vSq}")
        A(f"v_rsq_f32 v{vSq}, v{vSq}")
        A("v_lshlrev_b32 v3, 4, v14")
        for r in range(4):
            A(f"v_add_u32 v4, {4*r}, v3"); A(f"ds_bpermute_b32 v{48+r}, v4, v{vSq}")
        self.A1_tail(Z, 14, 15, 84, 160, 180, 200)
    def A1_dma_x3(self, s):
        slot = (s % 3) * self.STG
        return [[f"s_add_u32 m0, s31, {slot + i*1024}", f"s_add_u32 s33, s29, {i*4*163840 + s*256}",
                 (f"buffer_load_dwordx4 v{16+i}, {SRD_X}, s33 offen lds", f"a1s{s}")] for i in range(4)]
    def A1_dma_w3(self, s):
        slot = (s % 3) * self.STG
        return [[f"s_add_u32 m0, s32, {slot + ct*4096}", f"s_add_u32 s33, s30, {ct*8*1280 + s*256}",
                 (f"buffer_load_dwordx4 v{21 if ct == 0 else 20}, s[36:39], s33 offen lds", f"a1s{s}")] for ct in range(5)]

    def A1b_pre(self, first=False):
        A = self.A; wave = sWAVE
        A(f"s_mov_b32 s38, {D*D*2}"); A("s_mov_b32 s39, 0x20000")
        A("v_lshrrev_b32 v14, 4, v0"); A("v_and_b32 v15, 15, v0")
        A(f"s_lshl_b32 s28, {wave}, 2"); A("v_add_u32 v3, s28, v14"); A("v_xor_b32 v3, v15, v3")
        A("v_mul_u32_u24 v4, 1280, v14"); A(f"v_lshl_add_u32 v28, v3, 4, v4")
        A(f"s_or_b32 s29, {sJ}, {wave}"); A("s_cmp_eq_u32 s29, 0"); A(f"s_cselect_b32 s29, {320*1280}, 0")
        A("v_cmp_eq_u32 vcc, 0, v14"); A(f"v_mov_b32 v5, s29"); A(f"v_cndmask_b32 v5, 0, v5, vcc"); A(f"v_add_u32 v29, v28, v5")
        A(f"s_mul_i32 s30, {sJ}, 40"); A(f"s_and_b32 s31, {wave}, 1"); A("s_lshl_b32 s31, s31, 2"); A("s_add_u32 s30, s30, s31"); A("s_mul_i32 s30, s30, 1280")
        A(f"s_lshl_b32 s32, {wave}, 10")
        if first:
            A("v_mul_u32_u24 v4, 163840, v15"); A("v_lshl_add_u32 v10, v14, 4, v4")
            A(f"s_lshl_b32 s31, {sHALF}, 2"); A(f"s_add_u32 s31, s31, {wave}"); A("s_lshl_b32 s31, s31, 4"); A(f"s_add_u32 s31, s31, {sC}"); A("s_mul_i32 s29, s31, 1280")
        else:
            A(f"s_lshl_b32 s31, {sHALF}, 2"); A(f"s_add_u32 s31, s31, {wave}"); A("s_mul_i32 s29, s31, 20480"); A(f"s_mul_i32 s33, {sC}, 163840"); A("s_add_u32 s29, s29, s33"); A(f"s_add_u32 s29, s29, {X2}")
            A(f"s_lshl_b32 s31, s31, 8"); A(f"s_lshl_b32 s33, {sC}, 13"); A("s_add_u32 s31, s31, s33"); A(f"s_add_u32 s31, s31, {ST2}")
            A("v_lshlrev_b32 v10, 4, v0")
            A("v_lshlrev_b32 v11, 4, v15"); A("v_lshl_add_u32 v11, v14, 11, v11")
    def A1b_srd(self):
        A = self.A
        A(f"s_cmp_lt_u32 {sWAVE}, 2"); A(f"s_cselect_b32 s36, s12, s16"); A(f"s_cselect_b32 s37, s13, s17")
    def A1b_raddr(self):
        A = self.A
        for qq in range(4):
            A(f"v_add_u32 v3, {4*qq}, v14"); A("v_xor_b32 v3, v15, v3"); A("v_lshlrev_b32 v3, 4, v3"); A(f"v_lshl_add_u32 v{30+qq}, v15, 8, v3")
            A(f"v_add_u32 v{34+qq}, {3*20480}, v{30+qq}")
    def A1b_wdma(self, s):
        slot = s % self.AR if self.o.get('w_persist', True) else s
        return [[f"s_add_u32 m0, s32, {slot*20480 + ct*4096}", f"s_add_u32 s33, s30, {ct*8*1280 + s*256}",
                 (f"buffer_load_dwordx4 v{29 if ct == 0 else 28}, s[36:39], s33 offen lds", f"a1w{s}")] for ct in range(5)]
    def A1b_xload(self, q, first):
        if first:
            return [(f"buffer_load_dwordx4 a[{4*q}:{4*q+3}], v10, {SRD_X}, s29 offen offset:{q*64}", f"x{q}")]
        return [f"s_add_u32 s33, s29, {(q // 4) * 4096}", (f"buffer_load_dwordx4 a[{4*q}:{4*q+3}], v10, {SRD_WS}, s33 offen offset:{(q % 4) * 1024}{SC1}", f"x{q}")]
    def A1b_main(self, Z, first=False):
        A = self.A; ws = SRD_WS; ACC = 64; FB = 96
        if first:
            npre = 20
            for r in range(4): A(f"v_mov_b32 v{56+r}, 0x3f803f80")
        else:
            A(f"buffer_load_dwordx4 v[52:55], v11, {ws}, s31 offen{SC1}", tag='st2')
            npre = self.o.get('a1_xpre', 8)
            for q in range(npre): self.emitl([self.A1b_xload(q, False)])
            ring = self.o.get('w_persist', True)
            for st in self.a1_wlate:
                if not ring or st < self.AR: self.emitl(self.A1b_wdma(st))
        dq = []
        def reads(k):
            s, qq = divmod(k, 4); hi = 4 if s >= 3 else 0; off = (s - 3 if s >= 3 else s) * 20480
            if self.o.get('w_persist', True):
                sl = s % self.AR; hi = 4 if sl >= 3 else 0; off = (sl - 3 if sl >= 3 else sl) * 20480
            fb = FB + 20 * (k % 2)
            return [f"ds_read_b128 v[{fb+4*ct}:{fb+4*ct+3}], v{30+hi+qq} offset:{off+ct*4096}" for ct in range(5)]
        def enter(s):
            if s == 0:
                A.wait_vm([f"a1w{k}" for k in range(5) if k not in self.a1_wlate]); A("s_barrier")
            elif self.o.get('w_persist', True):
                while dq: self.emitl([dq.pop(0)])
                A.wait_ds(); A.wait_vm([f"a1w{s}"]); A("s_barrier")
                if self.AR <= s + self.AR - 1 < 5: dq.extend(self.A1b_wdma(s + self.AR - 1))
            elif s in self.a1_wlate:
                A.wait_vm([f"a1w{s}"]); A("s_barrier")
            if first and s == self.o.get('p_at', 4): self.P_pre(self.PB)
        enter(0)
        self.stamp('a1_first')
        for x in reads(0): A(x)
        xq = npre
        for k in range(20):
            if k < 19:
                if (k + 1) % 4 == 0: enter((k + 1) // 4)
                rl = reads(k + 1)
            else: rl = []
            fb = FB + 20 * (k % 2)
            for ct in range(5):
                a = ACC + 4 * ct; c = "0" if k == 0 else f"v[{a}:{a+3}]"
                A(f"v_mfma_f32_16x16x32_bf16 v[{a}:{a+3}], a[{4*k}:{4*k+3}], v[{fb+4*ct}:{fb+4*ct+3}], {c}")
                if rl: A(rl.pop(0))
                if ct == 2 and xq < 20: self.emitl([self.A1b_xload(xq, False)]); xq += 1
                if dq and ct in (0, 4): self.emitl([dq.pop(0)])
            if first:
                c1 = "0" if k == 0 else "v[84:87]"; c2 = "0" if k == 0 else "v[88:91]"
                A(f"v_mfma_f32_16x16x32_bf16 v[84:87], a[{4*k}:{4*k+3}], a[{4*k}:{4*k+3}], {c1}")
                A(f"v_mfma_f32_16x16x32_bf16 v[88:91], a[{4*k}:{4*k+3}], v[56:59], {c2}")
        self.stamp('a1_loop')
        if first:
            A("v_mul_u32_u24 v3, 80, v14")
            for r in range(4):
                A(f"v_add_u32 v4, {4*r}, v3"); A(f"ds_bpermute_b32 v{52+r}, v4, v{84+r}")
            for r in range(4):
                A(f"v_mul_f32 v{88+r}, {f2u(1/640):#x}, v{88+r}"); A(f"v_mul_f32 v{52+r}, {f2u(1/640):#x}, v{52+r}")
                A(f"v_fma_f32 v{52+r}, -v{88+r}, v{88+r}, v{52+r}"); A(f"v_add_f32 v{52+r}, {f2u(1e-5):#x}, v{52+r}")
                A(f"v_rsq_f32 v{48+r}, v{52+r}")
        else:
            A("v_add_f32 v52, v52, v54"); A("v_add_f32 v53, v53, v55")
            for v in (52, 53):
                A(f"v_mov_b32 v3, v{v}"); A(f"v_permlane16_swap_b32 v{v}, v3"); A(f"v_add_f32 v{v}, v{v}, v3")
                A(f"v_mov_b32 v3, v{v}"); A(f"v_permlane32_swap_b32 v{v}, v3"); A(f"v_add_f32 v{v}, v{v}, v3")
            A(f"v_mul_f32 v52, {f2u(1/640):#x}, v52"); A(f"v_mul_f32 v53, {f2u(1/640):#x}, v53")
            A(f"v_fma_f32 v53, -v52, v52, v53"); A(f"v_add_f32 v53, {f2u(1e-5):#x}, v53")
            A(f"v_rsq_f32 v53, v53")
            A("v_lshlrev_b32 v3, 4, v14")
            for r in range(4):
                A(f"v_add_u32 v4, {4*r}, v3"); A(f"ds_bpermute_b32 v{48+r}, v4, v53")
        self.A1_tail(Z, 14, 15, 140, 96, 116, 64)

    XW = 81920
    def A1c_pre(self):
        A = self.A; wave = sWAVE
        A(f"s_mov_b32 s38, {D*D*2}"); A("s_mov_b32 s39, 0x20000")
        A("v_lshrrev_b32 v14, 4, v0"); A("v_and_b32 v15, 15, v0")
        for i in range(4):
            A(f"v_add_u32 v3, {4*i}, v14"); A("v_xor_b32 v3, v15, v3")
            A(f"v_mul_u32_u24 v4, 163840, v14"); A(f"v_lshl_add_u32 v{16+i}, v3, 4, v4")
        A(f"s_lshl_b32 s28, {wave}, 2"); A("v_add_u32 v3, s28, v14"); A("v_xor_b32 v3, v15, v3")
        A("v_mul_u32_u24 v4, 1280, v14"); A(f"v_lshl_add_u32 v28, v3, 4, v4")
        A(f"s_or_b32 s29, {sJ}, {wave}"); A("s_cmp_eq_u32 s29, 0"); A(f"s_cselect_b32 s29, {320*1280}, 0")
        A("v_cmp_eq_u32 vcc, 0, v14"); A(f"v_mov_b32 v5, s29"); A(f"v_cndmask_b32 v5, 0, v5, vcc"); A(f"v_add_u32 v29, v28, v5")
        A(f"s_mul_i32 s30, {sJ}, 40"); A(f"s_and_b32 s31, {wave}, 1"); A("s_lshl_b32 s31, s31, 2"); A("s_add_u32 s30, s30, s31"); A("s_mul_i32 s30, s30, 1280")
        A(f"s_lshl_b32 s32, {wave}, 10"); A(f"s_add_u32 s32, s32, {self.XW}")
        A(f"s_lshl_b32 s29, {sHALF}, 2"); A(f"s_add_u32 s29, s29, {wave}"); A("s_lshl_b32 s29, s29, 4"); A(f"s_add_u32 s29, s29, {sC}"); A("s_mul_i32 s29, s29, 1280")
        A(f"s_lshl_b32 s31, {wave}, 12")
    def A1c_raddr(self):
        A = self.A
        for qq in range(4):
            A(f"v_add_u32 v3, {4*qq}, v14"); A("v_xor_b32 v3, v15, v3"); A("v_lshlrev_b32 v3, 4, v3"); A("v_lshl_add_u32 v3, v15, 8, v3")
            A(f"v_add_u32 v{20+qq}, s31, v3"); A(f"v_add_u32 v{24+qq}, 0x10000, v{20+qq}")
            A(f"v_add_u32 v{30+qq}, {self.XW}, v3")
    def capture(self, fn):
        save = self.A; rec = Asm(); self.A = rec
        try: fn()
        finally: self.A = save
        out = []; grp = None
        for i in rec.ins:
            if grp is not None:
                grp.append(i.text)
                if i.op.startswith('s_cselect'): out.append('\n'.join(grp)); grp = None
            elif i.op.startswith('s_cmp'): grp = [i.text]
            else: out.append(i.text)
        assert grp is None
        return out
    def warm_weights(self):
        A = self.A
        A(f"s_lshl_b32 s50, {sWG}, 2"); A(f"s_add_u32 s50, s50, {sWAVE}"); A("s_mul_i32 s50, s50, 2160")
        A("v_lshlrev_b32 v46, 4, v0"); A("v_add_u32 v46, s50, v46")
        k = 0
        for srd in (SRD_WG, SRD_WU, SRD_WD):
            for i in range(3):
                A(f"buffer_load_dwordx4 a[{160+4*k}:{163+4*k}], v46, {srd}, 0 offen offset:{min(i*1024, 2160-1024)}", tag='warm'); k += 1
    def init_issue(self):
        A = self.A
        A("v_and_b32 v236, 1, v0"); A("v_lshlrev_b32 v236, 7, v236"); A("v_bfe_u32 v3, v0, 1, 2"); A("v_lshl_add_u32 v236, v3, 4, v236")
        A(f"buffer_load_dword v237, v236, {SRD_DBG}, 0 offen sc1", tag='apoll')
    def init_check(self):
        A = self.A; l = self.lab('ic'); d = self.lab('icd')
        A("s_mov_b32 s62, 0"); A("v_cmp_gt_u32 vcc, 32, v237")
        A("s_nop 1", raw=True); A("s_cmp_eq_u64 vcc, 0", raw=True); A(f"s_cbranch_scc1 {d}")
        A.label(l)
        A(f"buffer_load_dword v237, v236, {SRD_DBG}, 0 offen sc1", raw=True); A("s_waitcnt vmcnt(0)", raw=True)
        A("v_cmp_gt_u32 vcc, 32, v237", raw=True); A("s_add_u32 s62, s62, 1"); A("s_nop 1", raw=True)
        A("s_cmp_eq_u64 vcc, 0", raw=True); A(f"s_cbranch_scc1 {d}")
        A(f"s_cmp_lt_u32 s62, {SPIN_MAX}"); A(f"s_cbranch_scc1 {l}")
        A.label(d)
    def res_from_lds(self):
        A = self.A
        A(f"s_mul_i32 s50, {sJ}, 160"); A("v_lshl_add_u32 v3, v14, 3, s50")
        for ct in range(5):
            if ct: A("v_add_u32 v3, 32, v3")
            A("v_lshrrev_b32 v4, 8, v3"); A("v_bfe_u32 v5, v3, 4, 4"); A("v_xor_b32 v5, v5, v15")
            A("v_lshlrev_b32 v4, 14, v4"); A("v_lshl_add_u32 v4, v5, 4, v4"); A("v_and_b32 v5, 8, v3"); A("v_add_u32 v4, v4, v5")
            A("v_lshl_add_u32 v4, v15, 8, v4"); A("v_add_u32 v4, s31, v4")
            A(f"ds_read_b64 v[{RES+2*ct}:{RES+2*ct+1}], v4")
    def A1c_xdma(self, s):
        return [[f"s_add_u32 m0, s31, {s*16384 + i*1024}", f"s_add_u32 s33, s29, {i*4*163840 + s*256}",
                 (f"buffer_load_dwordx4 v{16+i}, {SRD_X}, s33 offen lds", f"a1x{s}")] for i in range(4)]
    def A1c_wdma(self, s):
        return [[f"s_add_u32 m0, s32, {(s % self.WR)*20480 + ct*4096}", f"s_add_u32 s33, s30, {ct*8*1280 + s*256}",
                 (f"buffer_load_dwordx4 v{29 if ct == 0 else 28}, s[36:39], s33 offen lds", f"a1w{s}")] for ct in range(5)]
    def A1c_main(self, Z, dq0=(), fill=()):
        A = self.A; ACC = 64; FA = 92; FB = 100
        fill = list(fill)
        for r in range(4): A(f"v_mov_b32 v{60+r}, 0x3f803f80")
        def reads(k):
            s, qq = divmod(k, 4)
            fa = FA + 4 * (k % 2); fb = FB + 20 * (k % 2)
            xa = f"v{20+qq} offset:{s*16384}" if s < 4 else f"v{24+qq}"
            L = [f"ds_read_b128 v[{fa}:{fa+3}], {xa}"]
            for ct in range(5): L.append(f"ds_read_b128 v[{fb+4*ct}:{fb+4*ct+3}], v{30+qq} offset:{(s % self.WR)*20480 + ct*4096}")
            return L
        dq = list(dq0)
        def enter(s):
            A.wait_vm([f"a1w{s}", f"a1x{s}"]); A("s_barrier")
            if self.o.get('warm', False) and s == self.o.get('warm_at', 3): self.warm_weights()
            if s >= 1 and self.o.get('finestamp'): self.stamp(f'ent{s}')
            if s >= 1 and s + self.WR - 1 < 5: dq.extend(self.A1c_wdma(s + self.WR - 1))
        enter(0)
        self.stamp('a1_first')
        for x in reads(0): A(x)
        for k in range(20):
            if k < 19:
                if (k + 1) % 4 == 0:
                    while dq: self.emitl([dq.pop(0)])
                    A.wait_ds(); enter((k + 1) // 4)
                rl = reads(k + 1)
            else: rl = []
            fa = FA + 4 * (k % 2); fb = FB + 20 * (k % 2)
            for ct in range(5):
                a = ACC + 4 * ct; c = "0" if k == 0 else f"v[{a}:{a+3}]"
                A(f"v_mfma_f32_16x16x32_bf16 v[{a}:{a+3}], v[{fa}:{fa+3}], v[{fb+4*ct}:{fb+4*ct+3}], {c}")
                if rl: A(rl.pop(0))
                if dq: self.emitl([dq.pop(0)])
                for _ in range(2):
                    if fill: A(fill.pop(0))
            c1 = "0" if k == 0 else "v[84:87]"; c2 = "0" if k == 0 else "v[88:91]"
            A(f"v_mfma_f32_16x16x32_bf16 v[84:87], v[{fa}:{fa+3}], v[{fa}:{fa+3}], {c1}")
            if rl: A(rl.pop(0))
            for _ in range(3):
                if fill: A(fill.pop(0))
            A(f"v_mfma_f32_16x16x32_bf16 v[88:91], v[{fa}:{fa+3}], v[60:63], {c2}")
            while rl: A(rl.pop(0))
            for _ in range(3):
                if fill: A(fill.pop(0))
        while fill: A(fill.pop(0))
        self.stamp('a1_loop')
        self.init_issue()
        self.res_from_lds()
        if self.o.get('p_at', 6) == 5:
            A("s_barrier")
            self.P_pre(self.PB)
        A("v_mul_u32_u24 v3, 80, v14")
        for r in range(4):
            A(f"v_add_u32 v4, {4*r}, v3"); A(f"ds_bpermute_b32 v{52+r}, v4, v{84+r}")
        for r in range(4):
            A(f"v_mul_f32 v{88+r}, {f2u(1/640):#x}, v{88+r}"); A(f"v_mul_f32 v{52+r}, {f2u(1/640):#x}, v{52+r}")
            A(f"v_fma_f32 v{52+r}, -v{88+r}, v{88+r}, v{52+r}"); A(f"v_add_f32 v{52+r}, {f2u(1e-5):#x}, v{52+r}")
            A(f"v_rsq_f32 v{48+r}, v{52+r}")
        self.A1_tail(Z, 14, 15, 140, 96, 116, 64)

    def tile_out_frag(self, XF, ST, vn, vg):
        A = self.A; wave = sWAVE; ws = SRD_WS; ACC = 64
        A(f"v_lshrrev_b32 v3, 1, v{vg}"); A(f"v_and_b32 v4, 1, v{vg}"); A(f"v_lshlrev_b32 v5, 4, v{vn}"); A("v_lshl_add_u32 v5, v3, 8, v5"); A("v_lshl_add_u32 v13, v4, 3, v5")
        A(f"s_lshl_b32 s38, {sHALF}, 2"); A(f"s_add_u32 s38, s38, {wave}")
        A(f"s_mul_i32 s36, {sC}, 163840"); A("s_mul_i32 s37, s38, 20480"); A("s_add_u32 s36, s36, s37"); A(f"s_mul_i32 s37, {sJ}, 2560"); A("s_add_u32 s36, s36, s37"); A(f"s_add_u32 s36, s36, {XF}")
        for ct in range(5):
            a = ACC + 4 * ct
            for p in range(2):
                rr = RES + 2 * ct + p; t = 14 if p == 0 else 6
                A(f"v_lshlrev_b32 v{t}, 16, v{rr}"); A(f"v_and_b32 v{t+1}, 0xffff0000, v{rr}")
            for p in range(2):
                t = 14 if p == 0 else 6
                A(f"v_pk_add_f32 v[{a+2*p}:{a+2*p+1}], v[{a+2*p}:{a+2*p+1}], v[{t}:{t+1}]")
            for p in range(2):
                A(f"v_cvt_pk_bf16_f32 v{RES+2*ct+p}, v{a+2*p}, v{a+2*p+1}")
            A(f"buffer_store_dwordx2 v[{RES+2*ct}:{RES+2*ct+1}], v13, {ws}, s36 offen offset:{ct*512}{self.GST}", tag='xf')
        for k in range(10):
            a = ACC + 2 * k
            if k == 0:
                A(f"v_pk_mul_f32 v[52:53], v[{a}:{a+1}], v[{a}:{a+1}]"); A(f"v_pk_add_f32 v[50:51], v[{a}:{a+1}], v[{a+2}:{a+3}]")
            else:
                A(f"v_pk_fma_f32 v[52:53], v[{a}:{a+1}], v[{a}:{a+1}], v[52:53]")
                if k >= 2: A(f"v_pk_add_f32 v[50:51], v[50:51], v[{a}:{a+1}]")
        A("v_add_f32 v48, v50, v51"); A("v_add_f32 v49, v52, v53")
        for v in (48, 49):
            A(f"v_mov_b32 v3, v{v}"); A(f"v_permlane16_swap_b32 v{v}, v3"); A(f"v_add_f32 v{v}, v{v}, v3")
            A(f"v_mov_b32 v3, v{v}"); A(f"v_permlane32_swap_b32 v{v}, v3"); A(f"v_add_f32 v{v}, v{v}, v3")
        A(f"s_lshl_b32 s36, {sC}, 13"); A(f"s_lshr_b32 s37, {sJ}, 1"); A("s_lshl_b32 s37, s37, 11"); A("s_add_u32 s36, s36, s37")
        A("s_lshl_b32 s37, s38, 8"); A("s_add_u32 s36, s36, s37"); A(f"s_and_b32 s37, {sJ}, 1"); A("s_lshl_b32 s37, s37, 3"); A("s_add_u32 s36, s36, s37"); A(f"s_add_u32 s36, s36, {ST}")
        A(f"v_lshlrev_b32 v5, 4, v{vn}")
        A(f"buffer_store_dwordx2 v[48:49], v5, {ws}, s36 offen{self.GST}", tag='st')

    def A2_main(self, Z, XF, ST, after_z=None, before_out=None, after_issue=None):
        A = self.A; wave = sWAVE; ws = SRD_WS
        ACC = 64; FA = 96
        A(f"s_add_u32 s34, s34, {Z}")
        for qq in range(2):
            for ct in range(5):
                A(f"s_mul_i32 s36, s31, {ct}"); A("s_add_u32 s36, s36, s34")
                if qq: A(f"s_add_u32 s36, s36, {4*5120}")
                A(f"s_add_u32 m0, s35, {(qq*5+ct)*1024}")
                A(f"buffer_load_dwordx4 v{11 if ct == 0 else 10}, {ws}, s36 offen{SC1} lds", tag='z2')
        if after_issue:
            after_issue()
            A("v_and_b32 v1, 15, v0"); A("v_lshrrev_b32 v2, 4, v0"); A(f"v_lshlrev_b32 v12, 4, v0")
        A.wait_vm('z2'); A("s_barrier")
        if after_z: after_z()
        self.stamp('a2_z')
        def reads(q):
            return [f"ds_read_b128 v[{FA+20*(q%2)+4*ct}:{FA+20*(q%2)+4*ct+3}], v12 offset:{(q*5+ct)*1024}" for ct in range(5)]
        for x in reads(0): A(x)
        for q in range(8):
            rl = reads(q + 1) if q < 7 else []
            for ct in range(5):
                a = ACC + 4 * ct; c = "0" if q == 0 else f"v[{a}:{a+3}]"; f = FA + 20 * (q % 2) + 4 * ct
                A(f"v_mfma_f32_16x16x32_bf16 v[{a}:{a+3}], v[{f}:{f+3}], a[{128+4*q}:{128+4*q+3}], {c}")
                if rl: A(rl.pop(0))
        if before_out: before_out()
        A(f"s_cmp_eq_u32 {sJ}, 0"); A("s_cselect_b32 s40, 0, 1")
        A("v_mov_b32 v6, 0"); A("v_or_b32 v5, s40, v2"); A("v_cmp_eq_u32 vcc, 0, v5"); A(f"v_cndmask_b32 v{ACC}, v{ACC}, v6, vcc")
        self.tile_out_frag(XF, ST, 1, 2)

    SHH = ['s47', 's48', 's49', 's66', 's67', 's68', 's69']
    def B1_setup(self, XF, ST, HH, wait_p=None):
        A = self.A; wave = sWAVE; ws = SRD_WS; o = self.o
        R = o['b1_R']; CSL = R * 16384; self.CSL = CSL
        vX, vW, vHH, vCS = 10, 11, 12, 13
        A(f"s_mov_b32 s22, {sC1}"); A(f"s_mov_b32 s23, {sI1}"); A(f"s_mov_b32 s24, {sT0}")
        A(f"v_lshlrev_b32 v{vW}, 4, v0")
        A(f"s_mul_i32 s30, s24, 40960"); A(f"s_lshl_b32 s29, {wave}, 10"); A("s_add_u32 s30, s30, s29"); A(f"s_add_u32 s30, s30, {W1F}")
        for P in (1, 2, 3, 4): A(f"s_mul_i32 s{32+P}, {wave}, {P*1024}")
        stages = []
        for pi, tiles in enumerate(o['b1_passes']):
            P = len(tiles); KS = 4 if P >= 3 else 8
            for q0 in range(0, 40, KS): stages.append(dict(P=P, tiles=tiles, q0=q0, KS=KS, pi=pi))
        self.b1_stages = stages; self.b1_wdone = set(); self.b1_wcnt = {}
        A("v_and_b32 v1, 31, v0"); A("v_lshrrev_b32 v2, 5, v0"); A("v_lshrrev_b32 v3, 4, v1"); A("v_and_b32 v4, 15, v0")
        A("v_lshlrev_b32 v5, 4, v4"); A(f"v_lshl_add_u32 v5, v2, 8, v5")
        A(f"v_mul_u32_u24 v6, 20480, v3"); A(f"v_add_u32 v{vX}, v6, v5")
        A(f"v_lshl_add_u32 v{vHH}, v3, 10, v5")
        A(f"v_lshlrev_b32 v{vCS}, 4, v2"); A(f"v_add_u32 v{vCS}, {CSL}, v{vCS}"); A(f"v_add_u32 v14, 0x10000, v{vW}")
        A(f"s_mul_i32 s28, s22, 163840"); A(f"s_mul_i32 s29, {wave}, 40960"); A("s_add_u32 s28, s28, s29"); A(f"s_add_u32 s28, s28, {XF}")
        A(f"s_mul_i32 s31, s22, 442368"); A(f"s_lshr_b32 s29, {wave}, 1"); A("s_mul_i32 s29, s29, 221184"); A("s_add_u32 s31, s31, s29")
        A(f"s_and_b32 s29, {wave}, 1"); A("s_lshl_b32 s29, s29, 11"); A("s_add_u32 s31, s31, s29"); A(f"s_add_u32 s31, s31, {HH}")
        for t in range(7):
            if t < 4: A(f"s_lshl_b32 s40, s23, 2"); A(f"s_add_u32 s40, s40, {t}")
            elif t < 6:
                A(f"s_lshl_b32 s41, s23, 1"); A(f"s_add_u32 s40, s41, {t - 4 + 56}"); A(f"s_add_u32 s50, s41, {t - 4 + 62}")
                A(f"s_cmp_ge_u32 s23, 13"); A("s_cselect_b32 s40, s50, s40")
            else:
                A("s_add_u32 s40, s23, 82"); A("s_add_u32 s50, s23, 84"); A("s_cmp_ge_u32 s23, 6"); A("s_cselect_b32 s40, s50, s40")
            A(f"s_add_u32 s41, s24, {t}"); A("s_cmp_ge_u32 s41, 98"); A("s_cselect_b32 s40, s41, s40")
            A("s_lshr_b32 s41, s40, 1"); A("s_lshl_b32 s41, s41, 12"); A("s_and_b32 s40, s40, 1"); A("s_lshl_b32 s40, s40, 9")
            A("s_add_u32 s40, s40, s41"); A(f"s_add_u32 {self.SHH[t]}, s40, s31")
        A(f"v_lshlrev_b32 v7, 4, v1"); A(f"v_lshl_add_u32 v7, v2, 12, v7")
        A(f"s_lshl_b32 s42, s22, 13"); A(f"s_lshl_b32 s37, {wave}, 9"); A("s_add_u32 s42, s42, s37"); A(f"s_add_u32 s42, s42, {ST}")
        A(f"s_lshl_b32 s37, {wave}, 8"); A("v_lshlrev_b32 v8, 2, v0"); A("v_add_u32 v8, s37, v8")
        A(f"s_lshl_b32 s43, s24, 7"); A(f"s_add_u32 s43, s43, {CSP}")
        if wait_p: wait_p()
    def B1_prefetch(self):
        o = self.o; R = o['b1_R']
        npre = min(o['b1_pre'], R - 2); nA = min(o.get('b1_preA', 0), npre)
        for s in range(nA): self.b1_emitl(self.b1_dma_stage(s))
        def partB(raw):
            for s in range(nA, npre):
                if raw: self.emitl(self.b1_dma_stage(s), raw=True)
                else: self.b1_emitl(self.b1_dma_stage(s))
        self.b1_partB = partB
        self.b1_npre = npre
    def B1_csload(self):
        A = self.A
        for k in range(5):
            A(f"buffer_load_dword v{59+k}, v8, {SRD_WS}, s43 offen{SC1}", tag='csp')
            if k < 4: A(f"s_add_u32 s43, s43, {108*128}")
    def B1_cs(self):
        A = self.A
        A("v_add_f32 v59, v59, v60"); A("v_add_f32 v61, v61, v62"); A("v_add_f32 v59, v59, v63"); A("v_add_f32 v59, v59, v61")
        A(f"v_add_u32 v8, {self.CSL}, v8"); A("ds_write_b32 v8, v59")

    def B1_main(self, b2w=None):
        A = self.A; ws = SRD_WS; o = self.o
        R = o['b1_R']; RA = o['b1_RA']; CSL = self.CSL; stages = self.b1_stages; NSTG = len(stages)
        WB = 32; NB = RA + 1; vNm, vStd, vR1 = 56, 57, 58
        ACCB = o.get('b1_acc', [[64, 80, 96, 112], [128, 144], [64]])
        vX, vW, vHH, vCS = 10, 11, 12, 13; CSR = 200; OUT = [216, 220]
        LAT = o.get('b1_lat', 28); pace = o.get('b1_pace', 2.1)
        self.b1_xdone = set()
        frags = []
        for s, st in enumerate(stages):
            slot = (s % R) * 16384
            for qq in range(st['KS']):
                for ti, t in enumerate(st['tiles']):
                    frags.append((s, slot + (qq * st['P'] + ti) * 1024, t, st['q0'] + qq))
        NF = len(frags)
        first_of_stage = {}; first_of_q = {}
        for f, (s, addr, t, q) in enumerate(frags):
            first_of_stage.setdefault(s, f); first_of_q.setdefault(q, f)
        memq = []
        lastx = [None]
        def xload(q):
            g = []
            g.append(f"s_add_u32 s39, s28, {(q // 8) * 4096}")
            g.append((f"buffer_load_dwordx4 a[{4*q}:{4*q+3}], v{vX}, {ws}, s39 offen offset:{(q % 8) * 512}{SC1}", f"x{q}"))
            return g
        for q in range(40): memq.append(dict(dl=first_of_q[q] - LAT, av=-1, grp=xload(q), key=('x', q)))
        for s in range(self.b1_npre, NSTG):
            for d in self.b1_dma_stage(s):
                memq.append(dict(dl=first_of_stage[s] - RA - LAT, av=s - (R - 2), grp=d, key=('w', s)))
        nb2 = 0
        if b2w:
            p1start = first_of_stage[[s for s, st in enumerate(stages) if st['pi'] == 1][0]]
            for k, g in enumerate(b2w): memq.append(dict(dl=100000 + k, av=-1, minslot=p1start + o.get('b2w_off', 0), grp=g, key=('b2', k)))
        state = dict(cur=-1, slot=-1)
        def eligible(m): return m['av'] <= state['cur'] and m.get('minslot', -1) <= state['slot']
        def pop_mem(force_key=None):
            best = None
            for m in memq:
                if force_key is not None:
                    if m['key'] == force_key: best = m; break
                elif eligible(m) and (best is None or m['dl'] < best['dl']): best = m
            if best is None: return False
            memq.remove(best)
            for x in best['grp']: self.b1_emit(x)
            return True
        def ensure(key):
            while any(m['key'] == key for m in memq):
                m = [m for m in memq if m['key'] == key][0]
                assert m['av'] <= state['cur'], (key, state)
                pop_mem(key)
        A(f"buffer_load_dwordx4 v[48:51], v7, {ws}, s42 offen{SC1}", tag='st')
        A(f"buffer_load_dwordx4 v[52:55], v7, {ws}, s42 offen offset:2048{SC1}", tag='st')
        for q in range(o.get('b1_xpre', 8)): ensure(('x', q))
        self.B1_csload()
        A("v_add_f32 v48, v48, v50"); A("v_add_f32 v49, v49, v51"); A("v_add_f32 v52, v52, v54"); A("v_add_f32 v53, v53, v55")
        A("v_add_f32 v48, v48, v52"); A("v_add_f32 v49, v49, v53")
        A("v_mov_b32 v50, v48"); A("v_mov_b32 v51, v49")
        A("v_permlane32_swap_b32 v48, v50"); A("v_permlane32_swap_b32 v49, v51")
        A("v_add_f32 v48, v48, v50"); A("v_add_f32 v49, v49, v51")
        A(f"v_mul_f32 v48, {f2u(1.0/640):#x}, v48"); A(f"v_mul_f32 v49, {f2u(1.0/640):#x}, v49")
        A(f"v_fma_f32 v49, -v48, v48, v49"); A(f"v_add_f32 v49, {f2u(1e-5):#x}, v49")
        A(f"v_sqrt_f32 v{vStd}, v49"); A(f"v_sub_f32 v{vNm}, 0, v48"); A(f"v_rcp_f32 v{vR1}, v{vStd}"); A(f"v_mul_f32 v{vR1}, {f2u(-LOG2E):#x}, v{vR1}")
        fillq = []
        last_pass = len(o['b1_passes']) - 1
        early_stage = [k for k, st in enumerate(stages) if st['pi'] == last_pass][o.get('b1_early_off', 2)]
        def acc(pi, ti): return ACCB[pi][ti]
        def epilogue(pi, ti, t, idx):
            a = acc(pi, ti); L = []
            for i in range(4): L.append(f"ds_read_b128 v[{CSR+4*i}:{CSR+4*i+3}], v{vCS} offset:{t*128 + i*32}")
            if o.get('b1_pk'):
                P2 = lambda x: f"v[{x}:{x+1}]"
                for r in range(0, 8, 2): L.append(f"v_pk_fma_f32 {P2(a+r)}, v[56:57], {P2(CSR+r)}, {P2(a+r)} op_sel:[0,0,0] op_sel_hi:[0,1,1]")
                for r in range(0, 8, 2): L.append(f"v_pk_mul_f32 {P2(a+r)}, v[58:59], {P2(a+r)} op_sel:[0,0] op_sel_hi:[0,1]")
                for r in range(8):
                    L.append(f"v_exp_f32 v{a+r}, v{a+r}")
                    if r % 2 == 1: L.append(f"v_pk_fma_f32 {P2(a+8+r-1)}, v[56:57], {P2(CSR+8+r-1)}, {P2(a+8+r-1)} op_sel:[0,0,0] op_sel_hi:[0,1,1]")
                for r in range(0, 8, 2): L.append(f"v_pk_fma_f32 {P2(a+r)}, {P2(a+r)}, v[56:57], v[56:57] op_sel:[0,1,1] op_sel_hi:[1,1,1]")
                for r in range(8): L.append(f"v_rcp_f32 v{a+r}, v{a+r}")
                for r in range(0, 8, 2): L.append(f"v_pk_mul_f32 {P2(a+8+r)}, {P2(a+8+r)}, {P2(a+r)}")
                ot = OUT[idx % 2]
                for r in range(4): L.append(f"v_cvt_pk_bf16_f32 v{ot+r}, v{a+8+2*r}, v{a+8+2*r+1}")
                L.append((f"buffer_store_dwordx4 v[{ot}:{ot+3}], v{vHH}, {ws}, {self.SHH[t]} offen{self.GST}", f'hh{pi}'))
                return [(a, x, pi) for x in L]
            for r in range(8): L.append(f"v_fma_f32 v{a+r}, v{vNm}, v{CSR+r}, v{a+r}")
            for r in range(8): L.append(f"v_mul_f32 v{a+r}, v{vR1}, v{a+r}")
            for r in range(8):
                L.append(f"v_exp_f32 v{a+r}, v{a+r}"); L.append(f"v_fma_f32 v{a+8+r}, v{vNm}, v{CSR+8+r}, v{a+8+r}")
            L.append(f"v_fma_f32 v{a}, v{a}, v{vStd}, v{vStd}")
            for r in range(8):
                if r < 7: L.append(f"v_fma_f32 v{a+r+1}, v{a+r+1}, v{vStd}, v{vStd}")
                L.append(f"v_rcp_f32 v{a+r}, v{a+r}")
            for r in range(8): L.append(f"v_mul_f32 v{a+8+r}, v{a+8+r}, v{a+r}")
            ot = OUT[idx % 2]
            for r in range(4): L.append(f"v_cvt_pk_bf16_f32 v{ot+r}, v{a+8+2*r}, v{a+8+2*r+1}")
            L.append((f"buffer_store_dwordx4 v[{ot}:{ot+3}], v{vHH}, {ws}, {self.SHH[t]} offen{self.GST}", f'hh{pi}'))
            return [(a, x, pi) for x in L]
        def cost(x):
            t = x[0] if isinstance(x, tuple) else x
            return 8 if t.split()[0] in TRANS else 4
        def read_frag(f):
            s, addr, t, q = frags[f]; b = WB + 4 * (f % NB)
            if addr < 65536: A(f"ds_read_b128 v[{b}:{b+3}], v{vW} offset:{addr}", tag='wf')
            else: A(f"ds_read_b128 v[{b}:{b+3}], v14 offset:{addr-65536}", tag='wf')
        def enter_stage(s):
            ensure(('w', s))
            assert s in self.b1_wdone, s
            p1s = [k for k, st in enumerate(stages) if st['pi'] == 1][0]
            if self.b1_p2 and s == p1s - 1: self.apoll_issue(SRD_WS, line(L_P), 256)
            if self.b1_p2 and s == p1s: self.apoll_check(SRD_WS, line(L_P), 256, 15)
            if self.b1_hhearly and s == NSTG - 1: self.b1_hhearly(0)
            early = self.b1_early is not None and s == early_stage
            if early:
                while any(x[2] == 0 for x in fillq): self.b1_emit(fillq.pop(0)[1])
                A.wait_vm(['hh0'])
            if s == 1: self.B1_cs()
            A.wait_vm([f"w{s}"])
            if s == 1: A.wait_ds()
            A("s_barrier")
            state['cur'] = s
            if s == 0: self.stamp('b1_first')
            if early: self.b1_early()
        cur = [-1]
        def pre_read(f):
            if f >= NF: return
            if frags[f][0] != cur[0]:
                cur[0] = frags[f][0]; enter_stage(cur[0])
            read_frag(f)
        for f in range(min(RA, NF)): pre_read(f)
        tidx = 0; credit = 1.0
        for f in range(NF):
            state['slot'] = f
            s, addr, t, q = frags[f]
            st = stages[s]; pi = st['pi']; ti = st['tiles'].index(t)
            a = acc(pi, ti); b = WB + 4 * (f % NB)
            if q == 0:
                while any(x[0] == a for x in fillq):
                    x = fillq.pop(0); self.b1_emit(x[1])
            ensure(('x', q))
            c = "0" if q == 0 else f"v[{a}:{a+15}]"
            if o.get('exp16'):
                for hh_ in range(2):
                    aa = a + 4 * (hh_ + 2 * (q % 2)); cc = "0" if q < 2 else f"v[{aa}:{aa+3}]"
                    A(f"v_mfma_f32_16x16x32_bf16 v[{aa}:{aa+3}], v[{b}:{b+3}], a[{4*q}:{4*q+3}], {cc}")
            else:
                A(f"v_mfma_f32_32x32x16_bf16 v[{a}:{a+15}], v[{b}:{b+3}], a[{4*q}:{4*q+3}], {c}")
            pre_read(f + RA)
            budget = o.get('b1_budget', 20) if pi < last_pass else o.get('b1_budget_last', 20)
            if pi == 1: budget = o.get('b1_budget1', budget)
            credit = min(credit + 1.0 / pace, 1.6)
            if credit >= 1.0 and pop_mem():
                credit -= 1.0; budget -= o.get('b1_memcost', 10)
            while fillq and budget > 0:
                x = fillq[0]
                cst = cost(x[1])
                if cst > budget + 3: break
                fillq.pop(0); self.b1_emit(x[1]); budget -= cst
                if isinstance(x[1], tuple): credit -= 1.0
            last_of_pass = (f + 1 == NF) or (stages[frags[f+1][0]]['pi'] != pi)
            if last_of_pass:
                self.stamp(f'b1_pass{pi}')
                for ti2, t2 in enumerate(st['tiles']):
                    fillq += epilogue(pi, ti2, t2, tidx); tidx += 1
        while any(x[2] < last_pass for x in fillq): self.b1_emit(fillq.pop(0)[1])
        if self.b1_hhearly: self.b1_hhearly(1)
        for _ in range(min(o.get('b1_tailpos', 56), len(fillq) - 1)): self.b1_emit(fillq.pop(0)[1])
        if self.b1_tail: self.b1_tail()
        while fillq: self.b1_emit(fillq.pop(0)[1])
        state['slot'] = 10 ** 6
        self.b1_left = [m['grp'] for m in sorted(memq, key=lambda m: m['dl'])]
        assert all(m['key'][0] == 'b2' for m in memq)


    @property
    def NL(self): return self.o.get('b2_nl', 22)
    @property
    def AR(self): return self.o.get('a1_ring', 3)
    @property
    def LB(self): return self.AR * 20480 + 10240
    def b2_lds_groups(self):
        L = []
        for i in range(self.NL):
            p, ct = 8 + i // 5, i % 5
            L.append([f"s_add_u32 m0, s100, {i*1024}", f"s_add_u32 s45, {self.wseg(p)}, {p*5120 + ct*1024}",
                      (f"buffer_load_dwordx4 v11, {SRD_WS}, s45 offen{SC1} lds", f"bl{i}")])
        return L
    def b2_wsrc(self, ks, ct):
        if ks < 8: return self.B2W_EARLY[ks * 5 + ct]
        i = (ks - 8) * 5 + ct
        if i < self.NL:
            b = (30 - self.NL) * 4 + ((ks % 2) * 5 + ct) * 4; assert b + 3 < 120; return f"a[{b}:{b+3}]"
        b = (i - self.NL) * 4; return f"a[{b}:{b+3}]"
    def seg_steps(self, d0, d1, d2, tmp):
        A = self.A; wave = sWAVE
        A(f"s_mul_i32 {d0}, {wave}, 7"); A(f"s_mul_i32 {d1}, {wave}, 3"); A(f"s_add_u32 {d1}, {d1}, 21")
        A(f"s_lshl_b32 {d2}, {wave}, 2"); A(f"s_add_u32 {d2}, {d2}, 30"); A(f"s_cmp_eq_u32 {wave}, 3"); A(f"s_cselect_b32 {tmp}, 1, 0"); A(f"s_sub_u32 {d2}, {d2}, {tmp}")
    def B2_wbase(self):
        A = self.A; wave = sWAVE
        self.seg_steps('s44', 's46', 's101', 's45')
        A(f"s_mul_i32 s45, {sJ}, 54")
        for r in ('s44', 's46', 's101'):
            A(f"s_add_u32 {r}, {r}, s45"); A(f"s_mul_i32 {r}, {r}, 5120"); A(f"s_add_u32 {r}, {r}, {WDF}")
        A(f"s_mul_i32 s100, {wave}, {self.NL*1024}"); A(f"s_add_u32 s100, s100, {self.LB}")
    @staticmethod
    def wseg(ks): return 's44' if ks < 7 else ('s46' if ks < 10 else 's101')
    def b2_wgroups(self, ks0, ks1):
        L = []
        for ks in range(ks0, ks1):
            for ct in range(5):
                L.append([f"s_add_u32 s45, {self.wseg(ks)}, {ks*5120 + (4096 if ct == 4 else 0)}",
                          (f"buffer_load_dwordx4 {self.b2_wreg(ks, ct)}, v11, {SRD_WS}, s45 offen offset:{(ct % 4)*1024}{SC1}", f"bw{ks}")])
        return L
    def B2_pre(self, HH):
        A = self.A; wave = sWAVE
        self.tile_roles()
        A("v_and_b32 v1, 15, v0"); A("v_lshrrev_b32 v2, 4, v0")
        A("s_lshl_b32 s30, s22, 1"); A("s_add_u32 s30, s30, s23"); A("s_mul_i32 s30, s30, 221184"); A(f"s_add_u32 s30, s30, {HH}")
        self.seg_steps('s31', 's29', 's41', 's28')
        for r in ('s31', 's29', 's41'):
            A(f"s_lshl_b32 {r}, {r}, 12"); A(f"s_add_u32 {r}, {r}, s30")
        for u in range(4):
            A(f"s_add_u32 s28, {wave}, {u}"); A("s_and_b32 s28, s28, 3"); A("s_lshl_b32 s28, s28, 10")
            A(f"s_add_u32 s{32+u}, s31, s28"); A(f"s_add_u32 s{36+u}, s29, s28"); A(f"s_add_u32 s{52+u}, s41, s28")
        A("s_lshl_b32 s43, s23, 2"); A(f"s_add_u32 s43, s43, {wave}")
    def b2_hloads(self, ks):
        b = 32 if ks < 7 else (36 if ks < 10 else 52)
        return [[f"s_add_u32 s40, s{b+u}, {ks*4096}", f"buffer_load_dwordx4 {self.b2_hreg(ks,u)}, v11, {SRD_WS}, s40 offen{SC1}"] for u in range(4)]
    def B2_main(self, final, left, layer):
        A = self.A; wave = sWAVE; ws = SRD_WS; o = self.o
        ACC = 64; NK = 14
        lateL = line(L_C(layer)); earlyL = line(L_E(layer))
        if not o.get('b2_hhearly', False):
            self.apoll1_check(f"s_lshl_b32 s57, {sC}, 8", earlyL, 16)
            for ks in range(3): self.emitl(self.b2_hloads(ks))
        A.wait_vm([f"hh{len(o['b1_passes'])-1}"]); A("s_barrier")
        A(f"s_lshl_b32 s61, {sC1}, 8"); A(f"s_add_u32 s61, s61, {lateL}")
        self.one_lane(["v_mov_b32 v254, 1", "v_mov_b32 v255, 0", f"buffer_atomic_add v254, v255, {ws}, s61 offen{self.GAT}"])
        self.stamp('late_arr')
        A("v_mul_u32_u24 v5, 163840, v1"); A(f"v_lshl_add_u32 v12, v2, 3, v5")
        ldsm = o.get('b2_lds', True)
        if ldsm:
            direct = [[f"s_add_u32 s45, {self.wseg(8 + i // 5)}, {(8 + i // 5)*5120 + (i % 5)*1024}",
                       (f"buffer_load_dwordx4 {self.b2_wsrc(8 + i // 5, i % 5)}, v11, {SRD_WS}, s45 offen{SC1}", f"bw{8 + i // 5}")] for i in range(self.NL, 30)]
            wrest = list(left) + direct
            A("v_add_u32 v13, s100, v11")
        else:
            wrest = list(left) + self.b2_wgroups(8, 14)
        sched = {}
        hl = lambda k: self.b2_hloads(k)
        nw = o.get('b2_wper', 6)
        for p in range(NK): sched[p] = []
        sched[0] += hl(3); sched[1] += hl(4); sched[2] += hl(5); sched[3] += hl(6)
        pw = 0
        while wrest:
            k = min(pw, 5); n = nw if k < 5 else len(wrest)
            sched[k] += wrest[:n]; wrest = wrest[n:]; pw += 1
        pm = o.get('b2_midpos', 2); pl = o.get('b2_latepos', 5); midL = line(L_E1(layer))
        skip = self.lab('b2skip')
        nxt = 7; lim = 7
        for ks in range(NK):
            if ks == pm - 1: self.apoll1_issue(f"s_lshl_b32 s57, {sC}, 8", midL)
            if ks == pm:
                self.apoll1_check(f"s_lshl_b32 s57, {sC}, 8", midL, 16); self.stamp('mid_ok'); lim = 10
            if ks == pl - 1: self.apoll1_issue(f"s_lshl_b32 s57, {sC}, 8", lateL)
            if ks == pl:
                self.apoll1_check(f"s_lshl_b32 s57, {sC}, 8", lateL, 16); self.stamp('late_ok'); lim = NK
            cnt_l = 0
            while nxt < lim and nxt - 5 < ks and cnt_l < o.get('b2_lateburst', 4):
                sched[ks] = sched[ks] + hl(nxt); nxt += 1; cnt_l += 1
            q = list(sched[ks])
            if o.get('b2stamp') and ks % 2 == 0 and layer == 1: self.stamp(f'pos{ks}')
            if ks == NK - 1:
                while q: self.emitl([q.pop(0)])
                A(f"s_cmp_ge_u32 {wave}, 2"); A(f"s_cbranch_scc1 {skip}")
            emitted = sum(1 for i in A.ins if i.tag == f"bw{ks}" and i.kind == 'vload') - self.bw_base.get(ks, 0)
            if not (ldsm and ks >= 8):
                assert emitted >= 5 or (layer == 1 and ks < 8 and o.get('b2_persist', True)), (ks, emitted)
            dsq = []
            if ldsm and 7 <= ks < 13:
                nx = ks + 1
                idx = [(nx - 8) * 5 + ct for ct in range(5) if (nx - 8) * 5 + ct < self.NL]
                if idx and not (layer == 1 and o.get('w_persist', True)): A.wait_vm([f"bl{i}" for i in idx])
                dsq = [f"ds_read_b128 {self.b2_wsrc(nx, i % 5)}, v13 offset:{i*1024}" for i in idx]
            space = max(1, 20 // (len(q) + 1)) if q else 0
            cnt = 0
            for ct in range(5):
                for u in range(4):
                    a = ACC + (u * 5 + ct) * 4; c = "0" if ks == 0 else f"v[{a}:{a+3}]"
                    wr = self.b2_wsrc(ks, ct) if ldsm else self.b2_wreg(ks, ct)
                    A(f"v_mfma_f32_16x16x32_bf16 v[{a}:{a+3}], {wr}, {self.b2_hreg(ks, u)}, {c}")
                    cnt += 1
                    if q and cnt % space == 0: self.emitl([q.pop(0)])
                    if dsq and cnt % 3 == 1: A(dsq.pop(0))
            while q: self.emitl([q.pop(0)])
            while dsq: A(dsq.pop(0))
        assert nxt == NK
        A.label(skip)
        A("s_waitcnt vmcnt(0)")
        self.stamp('b2_loop')
        A("s_nop 7")
        A("v_lshlrev_b32 v10, 4, v0")
        for u in range(1, 4):
            A(f"s_add_u32 s31, {wave}, {u}"); A("s_and_b32 s31, s31, 3"); A("s_mul_i32 s31, s31, 15360"); A(f"s_add_u32 s31, s31, {(u-1)*5120}")
            A(f"v_add_u32 v13, s31, v10")
            for ct in range(5):
                a = ACC + (u * 5 + ct) * 4
                A(f"ds_write_b128 v13, v[{a}:{a+3}] offset:{ct*1024}")
        A(f"s_mul_i32 s31, {wave}, 15360"); A(f"v_add_u32 v13, s31, v10")
        A.drain(vm=False); A("s_barrier")
        T = 84
        for ct in range(5):
            for rk in range(3):
                A(f"ds_read_b128 v[{T+(ct*3+rk)*4}:{T+(ct*3+rk)*4+3}], v13 offset:{rk*5120+ct*1024}")
        for ct in range(5):
            a = ACC + ct * 4
            for rk in range(3):
                for r in (0, 2): A(f"v_pk_add_f32 v[{a+r}:{a+r+1}], v[{a+r}:{a+r+1}], v[{T+(ct*3+rk)*4+r}:{T+(ct*3+rk)*4+r+1}]")
        if not final:
            self.tile_out_frag(X2, ST2, 1, 2)
        else:
            A("s_lshl_b32 s37, s43, 4"); A("s_add_u32 s37, s37, s22"); A("s_mul_i32 s37, s37, 1280"); A("s_mul_i32 s38, s24, 160"); A("s_add_u32 s37, s37, s38")
            OB = 65536; RS = 160
            A(f"s_mul_i32 s38, {wave}, {16*RS}"); A(f"s_add_u32 s38, s38, {OB}")
            A(f"v_mul_u32_u24 v5, {RS}, v1"); A("v_lshl_add_u32 v5, v2, 3, v5"); A("v_add_u32 v5, s38, v5")
            for u in range(3):
                A(f"v_add_u32 v3, {64*u}, v0"); v_udiv(A, 'v4', 'v3', 10, 192)
                A(f"v_mul_u32_u24 v8, 10, v4"); A("v_sub_u32 v8, v3, v8")
                A(f"v_mul_u32_u24 v9, {RS}, v4"); A("v_lshl_add_u32 v9, v8, 4, v9"); A(f"v_add_u32 v{48+u}, s38, v9")
                A(f"v_mul_u32_u24 v9, 163840, v4"); A(f"v_lshl_add_u32 v{52+u}, v8, 4, v9")
            for ct in range(5):
                a = ACC + ct * 4
                for p in range(2):
                    rr = RES + 2 * ct + p; t = 14 if p == 0 else 6
                    A(f"v_lshlrev_b32 v{t}, 16, v{rr}"); A(f"v_and_b32 v{t+1}, 0xffff0000, v{rr}")
                for p in range(2):
                    t = 14 if p == 0 else 6
                    A(f"v_pk_add_f32 v[{a+2*p}:{a+2*p+1}], v[{a+2*p}:{a+2*p+1}], v[{t}:{t+1}]")
                for p in range(2): A(f"v_cvt_pk_bf16_f32 v{RES+2*ct+p}, v{a+2*p}, v{a+2*p+1}")
                A(f"ds_write_b64 v5, v[{RES+2*ct}:{RES+2*ct+1}] offset:{ct*32}")
            A.wait_ds()
            for u in range(3): A(f"ds_read_b128 v[{84+4*u}:{87+4*u}], v{48+u}")
            oa = o.get('out_aux', '')
            for u in range(2): A(f"buffer_store_dwordx4 v[{84+4*u}:{87+4*u}], v{52+u}, {SRD_OUT}, s37 offen{oa}", tag='out')
            A.wait_ds()
            A("s_mov_b32 exec_hi, 0")
            A(f"buffer_store_dwordx4 v[92:95], v54, {SRD_OUT}, s37 offen{oa}", tag='out')
            A("s_mov_b64 exec, -1")

    def apoll_issue(self, srd, soff, stride, reg=237):
        A = self.A
        A(f"v_and_b32 v236, 7, v0"); A(f"v_mul_u32_u24 v236, {stride}, v236")
        A(f"s_mov_b32 s57, {soff}")
        A(f"buffer_load_dword v{reg}, v236, {srd}, s57 offen sc1", tag='apoll')
    def apoll_check(self, srd, soff, stride, need, reg=237):
        A = self.A; l = self.lab('ap'); d = self.lab('apd')
        A("s_mov_b32 s62, 0")
        A(f"v_cmp_gt_u32 vcc, {need}, v{reg}")
        A("s_nop 1", raw=True); A("s_cmp_eq_u64 vcc, 0", raw=True); A(f"s_cbranch_scc1 {d}")
        A(f"v_and_b32 v236, 7, v0", raw=True); A(f"v_mul_u32_u24 v236, {stride}, v236", raw=True); A(f"s_mov_b32 s57, {soff}")
        A.label(l)
        A(f"buffer_load_dword v{reg}, v236, {srd}, s57 offen sc1", raw=True); A("s_waitcnt vmcnt(0)", raw=True)
        A(f"v_cmp_gt_u32 vcc, {need}, v{reg}", raw=True); A("s_add_u32 s62, s62, 1"); A("s_nop 1", raw=True)
        A("s_cmp_eq_u64 vcc, 0", raw=True); A(f"s_cbranch_scc1 {d}")
        A(f"s_cmp_lt_u32 s62, {SPIN_MAX}"); A(f"s_cbranch_scc1 {l}")
        A.label(d)
    def apoll1_issue(self, soff, base, reg=237):
        A = self.A
        A(soff); A(f"s_add_u32 s57, s57, {base}"); A("v_mov_b32 v236, 0")
        A(f"buffer_load_dword v{reg}, v236, {SRD_WS}, s57 offen sc1", tag='apoll')
    def apoll1_check(self, soff, base, need, reg=237):
        A = self.A; l = self.lab('ap'); d = self.lab('apd')
        A("s_mov_b32 s62, 0")
        A(f"v_cmp_gt_u32 vcc, {need}, v{reg}")
        A("s_nop 1", raw=True); A("s_cmp_eq_u64 vcc, 0", raw=True); A(f"s_cbranch_scc1 {d}")
        A(soff); A(f"s_add_u32 s57, s57, {base}")
        A.label(l)
        A(f"buffer_load_dword v{reg}, v236, {SRD_WS}, s57 offen sc1", raw=True); A("s_waitcnt vmcnt(0)", raw=True)
        A(f"v_cmp_gt_u32 vcc, {need}, v{reg}", raw=True); A("s_add_u32 s62, s62, 1"); A("s_nop 1", raw=True)
        A("s_cmp_eq_u64 vcc, 0", raw=True); A(f"s_cbranch_scc1 {d}")
        A(f"s_cmp_lt_u32 s62, {SPIN_MAX}"); A(f"s_cbranch_scc1 {l}")
        A.label(d)
    def wait_ge(self, srd, soff_code, need, nlanes=1, lane_stride=0, lane_code=None, partB=None, mid=None):
        npoll = self.o.get('npoll', 1)
        if npoll == 1: return Mega.wait_ge(self, srd, soff_code, need, nlanes, lane_stride, lane_code, partB, mid)
        A = self.A; l = self.lab('w'); d = self.lab('wd'); sk = self.lab('ws'); R = dict(raw=True)
        if partB:
            pb = self.lab('pb')
            A(f"s_cmp_eq_u32 {sWAVE}, 0"); A(f"s_cbranch_scc1 {pb}")
            partB(False)
            A.label(pb)
        if mid: mid()
        for x in soff_code: A(x)
        self.stamp('.prepoll')
        A(f"s_cmp_lg_u32 {sWAVE}, 0"); A(f"s_cbranch_scc1 {sk}")
        if lane_code:
            for x in lane_code: A(x, **R)
        else: A("v_mov_b32 v255, 0", **R)
        A("s_mov_b32 s62, 0")
        regs = ['v220', 'v221', 'v222'][:npoll]
        for k, r in enumerate(regs):
            A(f"buffer_load_dword {r}, v255, {srd}, s61 offen sc1", **R)
            if k + 1 < npoll: A(f"s_sleep {self.o.get('pollgap', 5)}", **R)
        A.label(l)
        for r in regs:
            A(f"s_waitcnt vmcnt({npoll-1})", **R)
            A(f"v_cmp_gt_u32 vcc, {need}, {r}", **R); A("s_add_u32 s62, s62, 1"); A("s_nop 1", **R)
            A("s_cmp_eq_u64 vcc, 0", **R); A(f"s_cbranch_scc1 {d}")
            A(f"buffer_load_dword {r}, v255, {srd}, s61 offen sc1", **R)
        A(f"s_cmp_lt_u32 s62, {SPIN_MAX}"); A(f"s_cbranch_scc1 {l}")
        A.label(d)
        A.label(sk)
        A("s_barrier")
        if partB:
            pb = self.lab('pb')
            A(f"s_cmp_lg_u32 {sWAVE}, 0"); A(f"s_cbranch_scc1 {pb}")
            partB(True)
            A.label(pb)
    def arrive(self, soff_code, pre=None):
        A = self.A
        if pre: pre()
        A.drain(); A("s_waitcnt vmcnt(0)")
        self.stamp('.drained')
        A("s_barrier")
        for x in soff_code: A(x)
        self.one_lane(["v_mov_b32 v254, 1", "v_mov_b32 v255, 0", f"buffer_atomic_add v254, v255, {SRD_WS}, s61 offen{self.GAT}"])
    def sA_arrive(self, layer, only=None, pre=None, mid=None, mid_vm=0, post=None):
        A = self.A; ws = SRD_WS
        if pre: pre()
        A.drain(); A("s_waitcnt vmcnt(0)")
        self.stamp('.drained')
        A("s_barrier")
        csrd, coff, roff, stride = (ws, line(L_A0C), line(L_A0R), 256) if layer == 0 else (ws, line(L_AC), line(L_AR), 256)
        A(f"s_mul_i32 s61, {sJ}, {stride}"); A(f"s_add_u32 s63, s61, {roff}")
        if coff: A(f"s_add_u32 s61, s61, {coff}")
        l = self.lab('rel')
        if self.o.get('sa_direct'):
            self.one_lane(["v_mov_b32 v254, 1", "v_mov_b32 v255, 0", f"buffer_atomic_add v254, v255, {csrd}, s61 offen sc1"])
            if mid: mid()
            if post: post()
            return
        self.one_lane(["v_mov_b32 v254, 1", "v_mov_b32 v255, 0", f"buffer_atomic_add v254, v255, {csrd}, s61 offen sc0 sc1"])
        if mid: mid()
        self.one_lane([f"s_waitcnt vmcnt({mid_vm})", "v_readfirstlane_b32 s62, v254", "s_nop 3", "s_cmp_lg_u32 s62, 31", f"s_cbranch_scc1 {l}",
                       "v_mov_b32 v254, 1", "v_mov_b32 v255, 0", f"buffer_store_dword v254, v255, {csrd}, s63 offen sc1", f"{l}:"])
        if post: post()
    def sA_wait(self, layer):
        A = self.A; ws = SRD_WS
        csrd, coff, roff, stride = (ws, line(L_A0C), line(L_A0R), 256) if layer == 0 else (ws, line(L_AC), line(L_AR), 256)
        A(f"s_lshl_b32 s50, {sJ}, 1"); A(f"s_sub_u32 s51, 14, s50")
        A(f"s_cmp_lt_u32 {sJ}, 4"); A("s_cselect_b32 s52, s50, s51")
        A("s_add_u32 s53, s52, 1")
        A("s_add_u32 s54, s52, 2"); A("s_and_b32 s54, s54, 7")
        A(f"s_cmp_lt_u32 {sJ}, 4"); A("s_cselect_b32 s54, s52, s54")
        lane_code = ["v_mov_b32 v255, s52", "v_mov_b32 v254, s53", "v_cmp_eq_u32 vcc, 1, v0", "s_nop 1", "v_cndmask_b32 v255, v255, v254, vcc",
                     "v_mov_b32 v254, s54", "v_cmp_eq_u32 vcc, 2, v0", "s_nop 1", "v_cndmask_b32 v255, v255, v254, vcc", f"v_mul_u32_u24 v255, {stride}, v255"]
        if self.o.get('sa_direct'): self.wait_ge(csrd, [f"s_mov_b32 s61, {coff}"], 32, lane_code=lane_code)
        else: self.wait_ge(csrd, [f"s_mov_b32 s61, {roff}"], 1, lane_code=lane_code)
    def wait_P(self):
        lane_code = ["v_and_b32 v255, 7, v0", "v_lshlrev_b32 v255, 8, v255"]
        self.wait_ge(SRD_WS, [f"s_mov_b32 s61, {line(L_P)}"], 32, lane_code=lane_code)
    def build(self):
        A = self.A; wave = sWAVE; ws = SRD_WS; o = self.o
        self.entry()
        pmode = o.get('p_at', 6)
        self.WR = 2 if pmode == 0 else 3
        self.A1c_pre()
        self.entry_wait()
        A(f"s_lshl_b32 s61, {sWG}, 8"); A(f"s_add_u32 s61, s61, {SYNC}")
        self.one_lane(["v_mov_b32 v254, 0", "v_mov_b32 v255, 0", f"buffer_store_dword v254, v255, {ws}, s61 offen sc1"])
        n_first = len(A.ins)
        if o.get('tlb'):
            A(f"v_mul_u32_u24 v6, {o.get('tlb')}, v0")
            A(f"buffer_load_dword v235, v6, {ws}, 0 offen", raw=True)
        self.A1b_srd()
        nup = o.get('a1_upfront', 2)
        for st in range(nup):
            self.emitl(self.A1c_xdma(st))
            if st < self.WR: self.emitl(self.A1c_wdma(st))
        PB = self.PB = 0
        nyoung = sum(1 for i in A.ins[n_first:] if i.kind in VM_KINDS and not i.raw) + sum(1 for i in A.ins[n_first:] if i.kind == 'phantom')
        A(f"s_and_b32 s61, {sWG}, 1"); A("s_lshl_b32 s61, s61, 7"); A(f"s_bfe_u32 s62, {sWG}, 0x20001"); A("s_lshl_b32 s62, s62, 4"); A("s_add_u32 s61, s61, s62")
        self.A1c_raddr()
        self.one_lane([f"s_waitcnt vmcnt({min(nyoung, 63)})", "v_mov_b32 v254, 1", "v_mov_b32 v255, 0", f"buffer_atomic_add v254, v255, {SRD_DBG}, s61 offen sc1"])
        self.stamp('issued')
        a1_dq = []
        for st in range(nup, 5):
            a1_dq += self.A1c_xdma(st)
            if st < self.WR: a1_dq += self.A1c_wdma(st)
        if o.get('warmh', False):
            def wh():
                A = self.A
                A(f"s_lshl_b32 s50, {sWG}, 2"); A(f"s_add_u32 s50, s50, {wave}"); A("s_lshl_b32 s50, s50, 9")
                A("v_lshlrev_b32 v47, 3, v0"); A("v_add_u32 v47, s50, v47")
                A(f"buffer_load_dwordx2 a[196:197], v47, {SRD_HRE}, 0 offen"); A(f"buffer_load_dwordx2 a[198:199], v47, {SRD_HIM}, 0 offen")
            a1_dq.append(self.capture(wh))
        cin = o.get('consts_in_loop', False)
        a1_fill = self.capture(lambda: (self.A1_tail_pre(Z1, 14, 15, self.XW + 61440), self.dft16_consts(), self.A2_consts() if cin else None))
        for layer in range(2):
            Z = (Z1, Z2)[layer]; XF = (X1F, X3F)[layer]; ST = (ST1, ST3)[layer]; HH = (HH1, HH2)[layer]
            self.ZA_bar = False
            if layer == 0:
                if self.WR == 3: self.ZA = self.XW + 61440
                else: self.ZA = self.XW; self.ZA_bar = True
                self.A1c_main(Z, dq0=a1_dq, fill=a1_fill)
            else:
                self.ZA = self.AR * 20480 if o.get('w_persist', True) else 102400; self.A1b_main(Z)
            self.stamp(f'a1_end{layer}')
            if layer == 0:
                PB = self.PB = self.XW
                def mid0():
                    self.P_pre(PB)
                    if not o.get('p_window', False): self.A2_setup()
                pwin = o.get('p_window', False)
                def post0():
                    if not cin: self.A2_consts()
                    if pwin:
                        self.P_main(PB)
                        A("v_and_b32 v1, 15, v0"); A("v_lshrrev_b32 v2, 4, v0"); A(f"v_lshlrev_b32 v12, 4, v0")
                        self.A2_setup()
                        l = self.lab('pd')
                        A(f"s_cmp_eq_u32 {wave}, 0"); A(f"s_cbranch_scc1 {l}"); A("s_waitcnt vmcnt(0)", raw=True); A.label(l)
                self.sA_arrive(0, pre=self.init_check, mid=mid0, mid_vm=8, post=post0)
            else:
                self.sA_arrive(1, pre=self.A2_setup, post=self.A2_consts)
            self.sA_wait(layer)
            def p_atomic():
                s_udiv(A, 's61', sWG, 5, 256); A(f"s_add_u32 s61, s61, {L_Q}")
                A(f"s_and_b32 s62, {sWG}, 7"); A(f"s_add_u32 s62, s62, {L_P}")
                A(f"s_cmp_lt_u32 {sWG}, 135"); A("s_cselect_b32 s61, s61, s62"); A("s_lshl_b32 s61, s61, 8"); A(f"s_add_u32 s61, s61, {line(0)}")
                A(f"s_cmp_eq_u32 {sWG}, 255"); A("s_cselect_b32 s62, 0, 1")
                self.one_lane(["v_mov_b32 v254, s62", "v_mov_b32 v255, 0", f"buffer_atomic_add v254, v255, {ws}, s61 offen sc1"])
            if layer == 0 and pwin: p_atomic()
            self.stamp(f'sA_done{layer}')
            def p_arrive():
                A.wait_vm('pst'); A("s_barrier"); p_atomic()
            inz = layer == 0 and not pwin
            self.A2_main(Z, XF, ST, after_issue=(lambda: self.P_main(PB)) if inz else None, before_out=p_arrive if inz else None)
            self.stamp(f'a2_end{layer}')
            def quad_addr():
                A(f"s_lshr_b32 s57, {sT0}, 2"); A(f"s_add_u32 s62, {sT0}, 6"); A("s_lshr_b32 s62, s62, 2")
                A("v_add_u32 v236, s57, v0"); A("v_min_u32 v236, s62, v236"); A("v_lshlrev_b32 v236, 8, v236"); A(f"s_mov_b32 s57, {line(L_Q)}")
            def preB():
                self.B2_wbase()
                self.B1_setup(XF, ST, HH)
                if layer == 0:
                    quad_addr(); A(f"buffer_load_dword v237, v236, {ws}, s57 offen sc1", tag='apoll')
            self.arrive([f"s_lshl_b32 s61, {sC}, 8", f"s_add_u32 s61, s61, {line(L_B(layer))}"], pre=preB)
            if layer == 0:
                l = self.lab('qp'); d = self.lab('qd')
                A("s_mov_b32 s62, 0"); A("v_cmp_gt_u32 vcc, 5, v237")
                A("s_nop 1", raw=True); A("s_cmp_eq_u64 vcc, 0", raw=True); A(f"s_cbranch_scc1 {d}")
                A.label(l)
                A(f"buffer_load_dword v237, v236, {ws}, s57 offen sc1", raw=True); A("s_waitcnt vmcnt(0)", raw=True)
                A("v_cmp_gt_u32 vcc, 5, v237", raw=True); A("s_add_u32 s62, s62, 1"); A("s_nop 1", raw=True)
                A("s_cmp_eq_u64 vcc, 0", raw=True); A(f"s_cbranch_scc1 {d}")
                A(f"s_cmp_lt_u32 s62, {SPIN_MAX}"); A(f"s_cbranch_scc1 {l}")
                A.label(d)
            self.B1_prefetch()
            self.wait_ge(ws, [f"s_lshl_b32 s61, {sC1}, 8", f"s_add_u32 s61, s61, {line(L_B(layer))}"], 16, partB=self.b1_partB)
            self.stamp(f'sB_done{layer}')
            persist = o.get('b2_persist', True)
            self.bw_base = {k: sum(1 for i in A.ins if i.tag == f"bw{k}" and i.kind == 'vload') for k in range(14)}
            def early():
                A(f"s_lshl_b32 s61, {sC1}, 8"); A(f"s_add_u32 s61, s61, {line(L_E(layer))}")
                self.one_lane(["v_mov_b32 v254, 1", "v_mov_b32 v255, 0", f"buffer_atomic_add v254, v255, {ws}, s61 offen{self.GAT}"])
            def tail():
                self.stamp(f'b1_mfma{layer}')
                A.wait_vm(['hh1']); A("s_barrier")
                A(f"s_lshl_b32 s61, {sC1}, 8"); A(f"s_add_u32 s61, s61, {line(L_E1(layer))}")
                self.one_lane(["v_mov_b32 v254, 1", "v_mov_b32 v255, 0", f"buffer_atomic_add v254, v255, {ws}, s61 offen{self.GAT}"])
                if not hhe: self.apoll1_issue(f"s_lshl_b32 s57, {sC}, 8", line(L_E(layer)))
            hhe = o.get('b2_hhearly', False)
            def hhearly(step):
                if step == 0: self.apoll1_issue(f"s_lshl_b32 s57, {sC}, 8", line(L_E(layer)))
                else:
                    self.B2_pre(HH)
                    self.apoll1_check(f"s_lshl_b32 s57, {sC}, 8", line(L_E(layer)), 16)
                    for ks in range(3): self.emitl(self.b2_hloads(ks))
            self.b1_early = early; self.b1_tail = tail; self.b1_p2 = (layer == 0); self.b1_hhearly = hhearly if hhe else None
            b2w = self.b2_wgroups(0, 8) if (layer == 0 or not persist) else []
            if o.get('b2_lds', True) and not (layer == 1 and o.get('w_persist', True)): b2w = (self.b2_lds_groups() + b2w) if o.get('b2_ldsfirst', False) else (b2w + self.b2_lds_groups())
            self.B1_main(b2w=b2w or None)
            if not hhe: self.B2_pre(HH)
            self.stamp(f'b1_end{layer}')
            self.B2_main(final=(layer == 1), left=self.b1_left, layer=layer)
            self.stamp(f'b2_end{layer}')
            if layer == 0:
                dcode = [f"s_lshl_b32 s61, {sC}, 1", f"s_add_u32 s61, s61, {sHALF}", "s_lshl_b32 s61, s61, 8", f"s_add_u32 s61, s61, {line(L_D)}"]
                def preD():
                    self.A1b_pre(); self.A1b_srd(); self.A1b_raddr(); self.A1_tail_pre(Z2, 14, 15, self.AR * 20480 if o.get('w_persist', True) else 102400)
                self.arrive(dcode, pre=preD)
                nwp = o.get('a1_wpre', 2)
                def pB(raw):
                    for s in range(0, nwp): self.emitl(self.A1b_wdma(s), raw=raw)
                self.wait_ge(ws, dcode, 8, partB=pB)
                self.a1_wlate = list(range(nwp, 5))
                self.stamp('sD_done')
        A.drain()
        if o.get('dbgtl'):
            l = self.lab('dt'); sel = o['dbgtl']; slots = [1, 2, 3, 5, 6, 7, 9, 10, 11, 13, 14, 15]
            A(f"s_cmp_lg_u32 {sWAVE}, 0"); A(f"s_cbranch_scc1 {l}"); A(f"s_cmp_lg_u32 {sWG}, {o.get('dbgwg', 0)}"); A(f"s_cbranch_scc1 {l}")
            A("v_readlane_b32 s50, v238, 0", raw=True)
            for nm, sl in zip(sel, slots):
                k = self.names.index(nm)
                A(f"v_readlane_b32 s51, v238, {k}", raw=True); A("s_nop 3", raw=True); A("s_sub_u32 s51, s51, s50")
                A("v_mov_b32 v254, s51", raw=True); A("v_mov_b32 v255, 0", raw=True)
                A(f"buffer_store_dword v254, v255, {SRD_DBG}, 0 offen offset:{4*sl}", raw=True)
            A("s_waitcnt vmcnt(0)", raw=True)
            A.label(l)
        self.stamp_flush()
        if o.get('dbgstamp'):
            A("s_waitcnt vmcnt(0)"); self.dbgstamp(1)
        A.label("L_exit")
        return A.text()

LDS2 = 163840
def make(out, diag=False, name=NAME + '_kernel', **opt):
    m = Mega3(diag=diag, **opt)
    body = m.build()
    txt = kernel_block(name, body, vgpr=512, sgpr=102, accum=256)
    if out:
        open(out, 'w').write(header([f"; @launch grid=(256,1,1) block=(256,1,1) lds={LDS2}"]) + txt)
    return txt, m
if __name__ == '__main__':
    make(f'cdna_kernels/{NAME}.s')
```
